```python
import torch

def _softmax(x, axis=-1):
    return torch.softmax(x, dim=axis)

def _gelu(x):
    return torch.nn.functional.gelu(x, approximate='tanh')

def _silu(x):
    return torch.nn.functional.silu(x)

def _sigmoid(x):
    return torch.sigmoid(x)

def _layernorm(x, axis=-1, eps=1e-05):
    m = x.mean(dim=axis, keepdim=True)
    v = x.var(dim=axis, keepdim=True, unbiased=False)
    return (x - m) / torch.sqrt(v + eps)

def _scatter_add(tgt, idx, src, axis=0):
    return tgt.clone().index_add_(axis, idx, src)

def _segment_sum(src, seg, n):
    out = torch.zeros((n,) + src.shape[1:], dtype=src.dtype)
    return out.index_add_(0, seg, src)

def _pad(x, pw):
    flat = tuple((v for pair in reversed(pw) for v in pair))
    return torch.nn.functional.pad(x, flat)
kernel_name = 'adaLN_cond__sliding_block_cached__swiglu_ffn__decode'

def setup_inputs():

    _w = lambda a: (lambda t: t.to(torch.bfloat16) if t.is_floating_point() else t)(torch.as_tensor(a))

    def _A_setup():
        B, Sq, D = (8, 1, 1024)
        Hq, Hkv, Sk, Dh = (32, 4, 4096, 128)
        assert Hq % Hkv == 0, (Hq, Hkv)
        return {'x': _w((lambda *s: torch.randn(*s, dtype=torch.bfloat16) * 0.05)(B, Sq, D)), 'k_cache': _w((lambda *s: torch.randn(*s, dtype=torch.bfloat16) * 3.2)(B, Hkv, Sk, Dh)), 'v_cache': _w((lambda *s: torch.randn(*s, dtype=torch.bfloat16) * 0.4)(B, Hkv, Sk, Dh)), 'wq': _w((lambda *s: torch.randn(*s, dtype=torch.bfloat16) * 3.2)(D, Hq * Dh) * D ** (-0.5)), 'wo': _w((lambda *s: torch.randn(*s, dtype=torch.bfloat16) * 0.4)(Hq * Dh, D) * (Hq * Dh) ** (-0.5))}
    _A_in = _A_setup()

    def _B_setup():
        B, S, D, F = (8, 1, 1024, 3584)
        return {'x': _w((lambda *s: torch.randn(*s, dtype=torch.bfloat16) * 0.05)(B, S, D)), 'w_gate': _w((lambda *s: torch.randn(*s, dtype=torch.bfloat16) * 0.05)(D, F)), 'w_up': _w((lambda *s: torch.randn(*s, dtype=torch.bfloat16) * 0.05)(D, F)), 'w_down': _w((lambda *s: torch.randn(*s, dtype=torch.bfloat16) * 0.05)(F, D))}
    _B_in = _B_setup()
    return {'A_x': _A_in['x'], 'A_k_cache': _A_in['k_cache'], 'A_v_cache': _A_in['v_cache'], 'A_wq': _A_in['wq'], 'A_wo': _A_in['wo'], 'B_x': _B_in['x'], 'B_w_gate': _B_in['w_gate'], 'B_w_up': _B_in['w_up'], 'B_w_down': _B_in['w_down'], 'c': _w((lambda *s: torch.randn(*s, dtype=torch.bfloat16) * 0.1)(8, 1024) * 8.0), 'w_mod': _w((lambda *s: torch.randn(*s, dtype=torch.bfloat16) * 0.1)(1024, 6 * 1024) * 1024 ** (-0.5) * 8.0)}

def reference(A_x, A_k_cache, A_v_cache, A_wq, A_wo, B_x, B_w_gate, B_w_up, B_w_down, c, w_mod):

    def _A_ref(x, k_cache, v_cache, wq, wo):
        B, Sq, D = x.shape
        Hq, Dh = (32, 128)
        Hkv, Sk = (k_cache.shape[1], k_cache.shape[2])
        W = min(4096, max(256, Sk // 4))
        rep = Hq // Hkv
        q = (lambda x, *d: x.permute(*d))((x @ wq).reshape(B, Sq, Hq, Dh), 0, 2, 1, 3)
        k = (lambda x, n, axis: torch.repeat_interleave(x, n, dim=axis))(k_cache[:, :, Sk - W:, :], rep, axis=1)
        v = (lambda x, n, axis: torch.repeat_interleave(x, n, dim=axis))(v_cache[:, :, Sk - W:, :], rep, axis=1)
        scores = torch.einsum('bhqd,bhkd->bhqk', q, k) * Dh ** (-0.5)
        p = _softmax(scores, axis=-1)
        o = torch.einsum('bhqk,bhkd->bhqd', p, v)
        return (lambda x, *d: x.permute(*d))(o, 0, 2, 1, 3).reshape(B, Sq, Hq * Dh) @ wo

    def _B_ref(x, w_gate, w_up, w_down):
        g = _silu(x @ w_gate)
        u = x @ w_up
        return g * u @ w_down
    x = A_x
    mod = (_silu(c) @ w_mod).reshape(c.shape[0], 6, 1, -1)
    sa, ca, ga, sb, cb, gb = (mod[:, 0].clone(), mod[:, 1].clone(), mod[:, 2].clone(), mod[:, 3].clone(), mod[:, 4].clone(), mod[:, 5].clone())
    h = _layernorm(x, axis=-1) * (1 + ca) + sa
    x = x + ga * _A_ref(h, A_k_cache, A_v_cache, A_wq, A_wo)
    h = _layernorm(x, axis=-1) * (1 + cb) + sb
    x = x + gb * _B_ref(h, B_w_gate, B_w_up, B_w_down)
    return x
```

```python
import re

NAME = "adaLN_cond__sliding_block_cached__swiglu_ffn__decode"
KN = NAME + "_kernel"

TRANS = ("v_exp_f32", "v_log_f32", "v_rcp_f32", "v_rsq_f32", "v_sqrt_f32", "v_sin_f32", "v_cos_f32",
         "v_rcp_iflag_f32")

_reg_re = re.compile(r"^(-?)(?:abs\()?([vsa])(?:(\d+)|\[(\d+):(\d+)\])\)?$")


def parse_reg(tok):
    tok = tok.strip()
    if tok in ("vcc",):
        return [("s", 106), ("s", 107)]
    if tok == "vcc_lo":
        return [("s", 106)]
    if tok == "vcc_hi":
        return [("s", 107)]
    if tok == "exec":
        return [("s", 126), ("s", 127)]
    if tok == "exec_lo":
        return [("s", 126)]
    if tok == "exec_hi":
        return [("s", 127)]
    if tok == "m0":
        return [("s", 124)]
    m = _reg_re.match(tok)
    if not m:
        return []
    k = m.group(2)
    if m.group(3) is not None:
        return [(k, int(m.group(3)))]
    return [(k, i) for i in range(int(m.group(4)), int(m.group(5)) + 1)]


def split_ops(s):
    out, depth, cur = [], 0, ""
    for ch in s:
        if ch in "[(":
            depth += 1
        elif ch in "])":
            depth -= 1
        if ch == "," and depth == 0:
            out.append(cur.strip())
            cur = ""
        else:
            cur += ch
    if cur.strip():
        out.append(cur.strip())
    return out


class Ins:
    __slots__ = ("text", "mn", "cls", "wr", "rd", "dpp", "passes", "srcC", "srcAB", "wide_store", "lanesel")

    def __init__(self, text):
        self.text = text
        t = text.split(";")[0].strip()
        parts = t.split(None, 1)
        self.mn = mn = parts[0]
        rest = parts[1] if len(parts) > 1 else ""
        ops = split_ops(rest)
        clean = []
        mods = ""
        for i, o in enumerate(ops):
            sp = o.split()
            clean.append(sp[0] if sp else "")
            if len(sp) > 1:
                mods += " " + " ".join(sp[1:])
        self.dpp = ("_dpp" in mn) or any(x in mods for x in ("quad_perm", "row_", "wave_"))
        self.wr, self.rd = [], []
        self.passes = 0
        self.srcC, self.srcAB = [], []
        self.wide_store = []
        self.lanesel = []
        regs = [parse_reg(o) for o in clean]
        if mn.startswith("v_mfma"):
            self.cls = "mfma"
            self.wr = regs[0]
            self.srcAB = regs[1] + regs[2]
            self.srcC = regs[3]
            self.rd = self.srcAB + self.srcC
            if "32x32x16" in mn or "32x32x8" in mn:
                self.passes = 8
            elif "4x4x4" in mn:
                self.passes = 2
            else:
                self.passes = 4
        elif mn.startswith("v_"):
            self.cls = "trans" if mn.replace("_e32", "").replace("_e64", "") in TRANS else "valu"
            if mn.startswith("v_cmp"):
                self.wr = regs[0] + ([("s", 126), ("s", 127)] if mn.startswith("v_cmpx") else [])
                self.rd = sum(regs[1:], [])
            elif "_co_" in mn:
                self.wr = regs[0] + regs[1]
                self.rd = sum(regs[2:], [])
            elif "permlane" in mn and "swap" in mn:
                self.wr = regs[0] + regs[1]
                self.rd = regs[0] + regs[1]
            elif mn.startswith("v_nop"):
                pass
            else:
                self.wr = regs[0]
                self.rd = sum(regs[1:], [])
                if mn.startswith(("v_fmac", "v_dot2c", "v_writelane", "v_pk_fmac")) or self.dpp:
                    self.rd = self.rd + regs[0]
                if mn.startswith(("v_readlane", "v_writelane")):
                    self.lanesel = regs[2]
                if mn.startswith("v_cndmask") and len(regs) == 3:
                    self.rd = self.rd + [("s", 106), ("s", 107)]
        elif mn.startswith(("buffer_", "global_", "flat_")):
            self.cls = "vmem"
            if "load" in mn and " lds" not in (" " + mods + " ") and not mods.strip().endswith("lds"):
                self.wr = regs[0]
                self.rd = sum(regs[1:], [])
            elif "atomic" in mn and "sc0" in mods:
                self.wr = regs[0]
                self.rd = sum(regs, [])
            else:
                self.rd = sum(regs, [])
                if "store" in mn and ("x4" in mn or "x3" in mn):
                    self.wide_store = regs[0] if mn.startswith("buffer_") else regs[1]
        elif mn.startswith("ds_"):
            self.cls = "ds"
            if mn.startswith(("ds_read", "ds_bpermute", "ds_permute", "ds_swizzle")) or "_rtn" in mn:
                self.wr = regs[0]
                self.rd = sum(regs[1:], [])
            else:
                self.rd = sum(regs, [])
        elif mn.startswith(("s_load", "s_buffer_load", "s_atomic", "s_memtime", "s_memrealtime")):
            self.cls = "smem"
            self.wr = regs[0]
            self.rd = sum(regs[1:], [])
        elif mn.startswith(("s_cbranch", "s_branch", "s_endpgm", "s_setpc", "s_swappc")):
            self.cls = "branch"
        elif mn.startswith("s_"):
            self.cls = "salu"
            if mn.startswith(("s_cmp", "s_nop", "s_waitcnt", "s_barrier", "s_sleep", "s_setprio", "s_bitcmp")):
                self.rd = sum(regs, [])
            else:
                self.wr = regs[0] if regs else []
                self.rd = sum(regs[1:], [])
                if "saveexec" in mn:
                    self.wr = self.wr + [("s", 126), ("s", 127)]
        else:
            raise ValueError("unknown instruction: " + text)


def required_gap(p, c):
    need = 0
    pw = set(p.wr)
    isvalu_p = p.cls in ("valu", "trans")
    isvalu_c = c.cls in ("valu", "trans")
    if isvalu_p:
        pv = {r for r in pw if r[0] in "va"}
        ps = {r for r in pw if r[0] == "s"}
        if pv:
            crd = set(c.rd)
            if c.cls == "mfma" and pv & crd:
                need = max(need, 2)
            if isvalu_c and pv & crd:
                if c.dpp or "permlane" in c.mn:
                    need = max(need, 2)
                if c.mn.startswith(("v_readlane", "v_readfirstlane")):
                    need = max(need, 1)
                if p.cls == "trans" and c.cls != "trans":
                    need = max(need, 1)
                if "op_sel" in p.text or "sdwa" in p.mn:
                    need = max(need, 1)
            if p.cls == "trans" and c.cls in ("vmem", "ds") and pv & crd:
                need = max(need, 1)
        if ps:
            crd = set(c.rd)
            if isvalu_c and ps & crd:
                need = max(need, 2)
                if ps & set(c.lanesel):
                    need = max(need, 4)
            if c.cls == "vmem" and ps & crd:
                need = max(need, 5)
            if ("s", 126) in ps:
                if c.cls == "mfma":
                    need = max(need, 4)
                if isvalu_c and (c.dpp):
                    need = max(need, 5)
                if isvalu_c and ("lane" in c.mn):
                    need = max(need, 4)
            if c.cls in ("salu", "smem", "branch") and ps & set(c.rd):
                need = max(need, 1)
    if p.cls == "mfma":
        n = p.passes
        t_ab = {2: 5, 4: 8, 8: 12, 16: 20}[n]
        t_cover = {2: 4, 4: 6, 8: 10, 16: 18}[n]
        t_war = {2: 1, 4: 3, 8: 7, 16: 15}[n]
        if c.cls == "mfma":
            if pw & set(c.srcAB):
                need = max(need, t_ab)
            if pw & set(c.srcC):
                if list(p.wr) == list(c.srcC) and p.passes == c.passes:
                    need = max(need, 2 if n == 2 else 0)
                else:
                    need = max(need, t_cover)
            elif pw & set(c.wr):
                need = max(need, t_ab)
        else:
            if pw & (set(c.rd) | set(c.wr)):
                need = max(need, t_ab)
            if isvalu_c and set(p.srcC) & set(c.wr):
                need = max(need, t_war)
    if p.cls == "vmem" and p.wide_store:
        if set(p.wide_store) & set(c.wr):
            need = max(need, 2)
    if p.cls == "salu" and ("s", 124) in pw:
        if c.cls in ("vmem", "ds"):
            need = max(need, 1)
    return need


MAXWIN = 20


class Asm:
    def __init__(self):
        self.out = []
        self.recent = []
        self.uid = 0

    def raw(self, s):
        self.out.append(s)

    def comment(self, s):
        self.out.append("    ; " + s)

    def label(self, name):
        self.flush()
        self.out.append(name + ":")

    def newlabel(self, base="L"):
        self.uid += 1
        return f"{base}_{self.uid}"

    def _advance(self, n):
        for e in self.recent:
            e[1] += n
        self.recent = [e for e in self.recent if e[1] < MAXWIN]

    def _nop(self, n):
        while n > 0:
            k = min(n, 16)
            self.out.append(f"    s_nop {k-1}")
            self._advance(k)
            n -= k

    def flush(self):
        need = 0
        for p, d in self.recent:
            w = 0
            if p.cls == "mfma":
                w = {2: 5, 4: 8, 8: 12, 16: 20}[p.passes]
            elif p.cls in ("valu", "trans"):
                w = 5 if any(r[0] == "s" for r in p.wr) else 2
            elif p.cls == "vmem" and p.wide_store:
                w = 2
            elif p.cls == "salu" and ("s", 124) in p.wr:
                w = 1
            need = max(need, w - d)
        if need > 0:
            self._nop(need)
        self.recent = []

    def __call__(self, text):
        for line in text.strip().split("\n"):
            line = line.strip()
            if not line or line.startswith(";"):
                if line:
                    self.out.append("    " + line)
                continue
            if line.endswith(":"):
                self.label(line[:-1])
                continue
            ins = Ins(line)
            if ins.cls == "branch":
                if ins.mn != "s_endpgm":
                    self.flush()
                self.out.append("    " + line)
                continue
            need = 0
            for p, d in self.recent:
                need = max(need, required_gap(p, ins) - d)
            if need > 0:
                self._nop(need)
            self.out.append("    " + line)
            n = 1
            if ins.mn == "s_nop":
                n = int(line.split()[1], 0) + 1
            self._advance(n)
            self.recent.append([ins, 0])

    def text(self):
        return "\n".join(self.out) + "\n"


def kernel_begin(A, name):
    A.raw(".text")
    A.raw(f".globl {name}")
    A.raw(".p2align 8")
    A.raw(f".type {name},@function")
    A.raw(f"{name}:")
    A.recent = []


def kernel_desc(A, name, nvgpr, nsgpr=102, accum=None):
    if accum is None:
        accum = (nvgpr + 3) // 4 * 4
        total = nvgpr
    else:
        total = nvgpr
    A.raw('.section .rodata,"a"')
    A.raw(".p2align 6")
    A.raw(f".amdhsa_kernel {name}")
    A.raw(f"  .amdhsa_next_free_vgpr {total}")
    A.raw(f"  .amdhsa_next_free_sgpr {nsgpr}")
    A.raw(f"  .amdhsa_accum_offset {accum}")
    A.raw("  .amdhsa_group_segment_fixed_size 0")
    A.raw("  .amdhsa_kernarg_size 112")
    A.raw("  .amdhsa_user_sgpr_count 2")
    A.raw("  .amdhsa_user_sgpr_kernarg_segment_ptr 1")
    A.raw("  .amdhsa_system_sgpr_workgroup_id_x 1")
    A.raw("  .amdhsa_float_denorm_mode_32 3")
    A.raw("  .amdhsa_float_denorm_mode_16_64 3")
    A.raw(".end_amdhsa_kernel")
```

```python
import sys
from asmgen import *

KA = dict(x=0, k=8, v=16, wq=24, wo=32, bx=40, wg=48, wu=56, wd=64, c=72, wmod=80, out=88, dbg=96, ws=104)
SZ = dict(x=16384, k=33554432, v=33554432, wq=8388608, wo=8388608, wg=7340032, wu=7340032, wd=7340032,
          c=16384, wmod=12582912, out=16384, dbg=256, ws=268435456)
WS_MOD, WS_Q, WS_ML, WS_O, WS_X1, WS_ACT = 0x000000, 0x020000, 0x040000, 0x050000, 0x060000, 0x070000
WS_OP, WS_P4, WS_P6 = 0x100000, 0x200000, 0x300000

LOG2E = 0x3fb8aa3b
NT = "nt"


def srd(A, sreg, name, tmp):
    A(f"s_load_dwordx2 s[{sreg}:{sreg+1}], s[0:1], {KA[name]}")


def srd_fin(A, sreg, name):
    A(f"s_mov_b32 s{sreg+2}, {SZ[name]}")
    A(f"s_mov_b32 s{sreg+3}, 0x20000")


def prologue(A, nwg, bufs):
    for n, s in bufs.items():
        srd(A, s, n, None)
    A(f"s_cmp_ge_u32 s2, {nwg}")
    A(f"s_cbranch_scc1 {A.endlabel}")
    A("v_and_b32 v1, 63, v0")
    A("v_lshrrev_b32 v2, 6, v0")
    A("v_readfirstlane_b32 s3, v2")
    A("v_and_b32 v2, 15, v1")
    A("v_lshrrev_b32 v3, 4, v1")
    A("s_mov_b32 s90, 0x05040100")
    A("s_mov_b32 s91, 0x07060302")
    A("s_waitcnt lgkmcnt(0)")
    for n, s in bufs.items():
        srd_fin(A, s, n)


def d64_voff(A, vdst, rs, t0, t1):
    A(f"v_lshrrev_b32 v{t0}, 3, v2")
    A(f"v_lshlrev_b32 v{t0}, 2, v{t0}")
    A(f"v_add_u32 v{t0}, v{t0}, v3")
    A(f"s_mov_b32 s89, {8*rs}")
    A(f"v_mul_lo_u32 v{t0}, v{t0}, s89")
    A(f"v_and_b32 v{t1}, 7, v2")
    A(f"v_lshlrev_b32 v{t1}, 4, v{t1}")
    A(f"v_add_u32 v{vdst}, v{t0}, v{t1}")


def load_tile(A, s, voff, sbase, rs, dst, flags=NT, rows=None):
    for i in range(8):
        r = i if rows is None else rows[i]
        A(f"s_add_u32 s88, s{sbase}, {r*rs}")
        A(f"buffer_load_dwordx4 v[{dst+4*i}:{dst+4*i+3}], v{voff}, s[{s}:{s+3}], s88 offen {flags}")


def perm_tile(A, src, dst):
    for d in range(4):
        for p in range(4):
            a = src + 4 * (2 * p) + d
            b = src + 4 * (2 * p + 1) + d
            A(f"v_perm_b32 v{dst+4*(2*d)+p}, v{b}, v{a}, s90")
            A(f"v_perm_b32 v{dst+4*(2*d+1)+p}, v{b}, v{a}, s91")


def mfma_tile(A, acc, af, F, first=False):
    for t in range(8):
        c = "0" if first else f"v[{acc+4*t}:{acc+4*t+3}]"
        A(f"v_mfma_f32_16x16x32_bf16 v[{acc+4*t}:{acc+4*t+3}], v[{af}:{af+3}], v[{F+4*t}:{F+4*t+3}], {c}")


def unpack8(A, src, dst):
    for d in range(4):
        A(f"v_lshlrev_b32 v{dst+2*d}, 16, v{src+d}")
        A(f"v_and_b32 v{dst+2*d+1}, 0xffff0000, v{src+d}")


def rnd2(A, a, b, t):
    A(f"v_cvt_pk_bf16_f32 v{t}, v{a}, v{b}")
    A(f"v_lshlrev_b32 v{a}, 16, v{t}")
    A(f"v_and_b32 v{b}, 0xffff0000, v{t}")


def rnd1(A, a):
    A(f"v_cvt_pk_bf16_f32 v{a}, v{a}, v{a}")
    A(f"v_and_b32 v{a}, 0xffff0000, v{a}")


def wave_sum(A, v, t, op="v_add_f32"):
    A(f"{op}_dpp v{v}, v{v}, v{v} quad_perm:[1,0,3,2] row_mask:0xf bank_mask:0xf")
    A(f"{op}_dpp v{v}, v{v}, v{v} quad_perm:[2,3,0,1] row_mask:0xf bank_mask:0xf")
    A(f"{op}_dpp v{v}, v{v}, v{v} row_half_mirror row_mask:0xf bank_mask:0xf")
    A(f"{op}_dpp v{v}, v{v}, v{v} row_mirror row_mask:0xf bank_mask:0xf")
    rows_red(A, v, t, op)


def rows_red(A, v, t, op):
    A(f"v_mov_b32 v{t}, v{v}")
    A(f"v_permlane16_swap_b32 v{v}, v{t}")
    A(f"{op} v{v}, v{v}, v{t}")
    A(f"v_mov_b32 v{t}, v{v}")
    A(f"v_permlane32_swap_b32 v{v}, v{t}")
    A(f"{op} v{v}, v{v}, v{t}")


def silu(A, x, t):
    A(f"v_mul_f32 v{t}, 0xbfb8aa3b, v{x}")
    A(f"v_exp_f32 v{t}, v{t}")
    A(f"v_add_f32 v{t}, 1.0, v{t}")
    A(f"v_rcp_f32 v{t}, v{t}")
    A(f"v_mul_f32 v{x}, v{x}, v{t}")


def lds_reduce_d64(A, acc, nw, vres, ldsbase=0, t0=4, t1=5):
    A(f"v_lshrrev_b32 v{t0}, 3, v2")
    A(f"v_lshlrev_b32 v{t0}, 11, v{t0}")
    A(f"v_and_b32 v{t1}, 7, v2")
    A(f"v_lshlrev_b32 v{t1}, 8, v{t1}")
    A(f"v_add_u32 v{t0}, v{t0}, v{t1}")
    A(f"v_and_b32 v{t1}, 1, v3")
    A(f"v_lshlrev_b32 v{t1}, 4, v{t1}")
    A(f"v_add_u32 v{t0}, v{t0}, v{t1}")
    A(f"s_lshl_b32 s88, s3, 12")
    A(f"s_add_u32 s88, s88, {ldsbase}")
    A(f"v_add_u32 v{t0}, s88, v{t0}")
    A("s_mov_b32 exec_lo, 0x00ff00ff")
    A("s_mov_b32 exec_hi, 0xff00ff00")
    for t in range(8):
        A(f"ds_write_b128 v{t0}, v[{acc+4*t}:{acc+4*t+3}] offset:{32*t}")
    A("s_mov_b64 exec, -1")
    A("s_waitcnt lgkmcnt(0)")
    A("s_barrier")
    A(f"v_lshlrev_b32 v{t0}, 2, v0")
    for j in range(2 * nw):
        A(f"ds_read_b32 v{acc+j}, v{t0} offset:{ldsbase + 2048*j}")
    A("s_waitcnt lgkmcnt(0)")
    A(f"v_add_f32 v{vres}, v{acc}, v{acc+1}")
    for j in range(2, 2 * nw):
        A(f"v_add_f32 v{vres}, v{vres}, v{acc+j}")


def ln_stats(A, sx, xoff, lds_off):
    A("v_lshlrev_b32 v4, 5, v1")
    A("s_lshl_b32 s88, s3, 11")
    A(f"s_add_u32 s88, s88, {xoff}")
    A(f"buffer_load_dwordx4 v[8:11], v4, s[{sx}:{sx+3}], s88 offen")
    A(f"buffer_load_dwordx4 v[12:15], v4, s[{sx}:{sx+3}], s88 offen offset:16")
    A("s_waitcnt vmcnt(0)")
    unpack8(A, 8, 16)
    unpack8(A, 12, 24)
    A("v_add_f32 v5, v16, v17")
    for j in range(18, 32):
        A(f"v_add_f32 v5, v5, v{j}")
    wave_sum(A, 5, 6)
    A("v_mul_f32 v5, 0x3a800000, v5")
    A("v_mov_b32 v7, 0")
    for j in range(16, 32):
        A(f"v_sub_f32 v6, v{j}, v5")
        A(f"v_fmac_f32 v7, v6, v6")
    wave_sum(A, 7, 6)
    A("v_mul_f32 v7, 0x3a800000, v7")
    rnd2(A, 5, 7, 6)
    A("v_add_f32 v7, 0x3727c5ac, v7")
    rnd1(A, 7)
    A("v_sqrt_f32 v7, v7")
    rnd1(A, 7)
    A("v_rcp_f32 v6, v7")
    A("v_fma_f32 v8, -v7, v6, 1.0")
    A("v_fma_f32 v6, v8, v6, v6")
    A("s_lshl_b32 s88, s3, 3")
    A(f"s_add_u32 s88, s88, {lds_off}")
    A("v_mov_b32 v4, s88")
    A("v_mov_b32 v8, v5")
    A("v_mov_b32 v9, v6")
    A("s_mov_b64 exec, 1")
    A("ds_write_b64 v4, v[8:9]")
    A("s_mov_b64 exec, -1")
    A("s_waitcnt lgkmcnt(0)")
    A("s_barrier")


def h_frag(A, sx, xoff, sws, shift_off, scale_off, sk0, af, lds_off, tmp):
    X, SA, CA, F1, F2, F3 = tmp, tmp + 4, tmp + 8, tmp + 12, tmp + 20, tmp + 28
    vo, vst = tmp + 36, tmp + 38
    A(f"v_lshrrev_b32 v{vo}, 3, v2")
    A(f"v_lshlrev_b32 v{vo}, 2, v{vo}")
    A(f"v_add_u32 v{vo}, v{vo}, v3")
    A(f"v_lshlrev_b32 v{vo}, 4, v{vo}")
    A(f"v_and_b32 v{vo+1}, 7, v2")
    A(f"v_lshlrev_b32 v{vst}, 3, v{vo+1}")
    A(f"v_add_u32 v{vst}, {lds_off}, v{vst}")
    A(f"ds_read_b64 v[{vst}:{vst+1}], v{vst}")
    A(f"s_lshl_b32 s88, s{sk0}, 1")
    A(f"v_lshlrev_b32 v{F1}, 11, v{vo+1}")
    A(f"v_add_u32 v{F1}, v{F1}, v{vo}")
    A(f"s_add_u32 s87, s88, {xoff}")
    A(f"buffer_load_dwordx4 v[{X}:{X+3}], v{F1}, s[{sx}:{sx+3}], s87 offen")
    A(f"s_mov_b32 s89, 12288")
    A(f"v_mul_lo_u32 v{F1}, v{vo+1}, s89")
    A(f"v_add_u32 v{F1}, v{F1}, v{vo}")
    A(f"s_add_u32 s87, s88, {WS_MOD + shift_off}")
    A(f"buffer_load_dwordx4 v[{SA}:{SA+3}], v{F1}, s[{sws}:{sws+3}], s87 offen")
    A(f"s_add_u32 s87, s88, {WS_MOD + scale_off}")
    A(f"buffer_load_dwordx4 v[{CA}:{CA+3}], v{F1}, s[{sws}:{sws+3}], s87 offen")
    A("s_waitcnt vmcnt(0) lgkmcnt(0)")
    unpack8(A, X, F1)
    unpack8(A, SA, F2)
    unpack8(A, CA, F3)
    t = vo
    for j in range(0, 8, 2):
        for q in (j, j + 1):
            A(f"v_sub_f32 v{F1+q}, v{F1+q}, v{vst}")
            A(f"v_add_f32 v{F3+q}, 1.0, v{F3+q}")
        rnd2(A, F1 + j, F1 + j + 1, t)
        rnd2(A, F3 + j, F3 + j + 1, t)
        for q in (j, j + 1):
            A(f"v_mul_f32 v{F1+q}, v{F1+q}, v{vst+1}")
        rnd2(A, F1 + j, F1 + j + 1, t)
        for q in (j, j + 1):
            A(f"v_mul_f32 v{F1+q}, v{F1+q}, v{F3+q}")
        rnd2(A, F1 + j, F1 + j + 1, t)
        for q in (j, j + 1):
            A(f"v_add_f32 v{F1+q}, v{F1+q}, v{F2+q}")
        A(f"v_cvt_pk_bf16_f32 v{af+j//2}, v{F1+j}, v{F1+j+1}")


def a_frag_buf(A, s, off, K, sk0, af, tmp):
    vo = tmp
    A(f"v_lshrrev_b32 v{vo}, 3, v2")
    A(f"v_lshlrev_b32 v{vo}, 2, v{vo}")
    A(f"v_add_u32 v{vo}, v{vo}, v3")
    A(f"v_lshlrev_b32 v{vo}, 4, v{vo}")
    A(f"v_and_b32 v{vo+1}, 7, v2")
    A(f"s_mov_b32 s89, {2*K}")
    A(f"v_mul_lo_u32 v{vo+1}, v{vo+1}, s89")
    A(f"v_add_u32 v{vo}, v{vo}, v{vo+1}")
    A(f"s_lshl_b32 s88, s{sk0}, 1")
    A(f"s_add_u32 s88, s88, {off}")
    A(f"buffer_load_dwordx4 v[{af}:{af+3}], v{vo}, s[{s}:{s+3}], s88 offen")


def k_mod(A):
    name = "k1_mod_kernel"
    kernel_begin(A, name); A.endlabel = "k1_end"
    SW, SC, SWS = 8, 12, 16
    prologue(A, 96, dict(wmod=SW, c=SC, ws=SWS))
    rs = 12288
    d64_voff(A, 6, rs, 4, 5)
    A("s_lshl_b32 s20, s3, 7")
    A(f"s_mul_i32 s21, s20, {rs}")
    A("s_lshl_b32 s22, s2, 7")
    A("s_add_u32 s21, s21, s22")
    for j in range(2):
        A(f"s_add_u32 s23, s21, {64*j*rs}")
        load_tile(A, SW, 6, 23, rs, 96 + 32 * j)
    for j in range(2):
        A(f"s_add_u32 s24, s20, {64*j}")
        a_frag_buf(A, SC, 0, 1024, 24, 8 + 4 * j, 4)
    A("s_waitcnt vmcnt(0)")
    for j in range(2):
        unpack8(A, 8 + 4 * j, 16)
        for q in range(8):
            silu(A, 16 + q, 24)
        for q in range(4):
            A(f"v_cvt_pk_bf16_f32 v{8+4*j+q}, v{16+2*q}, v{17+2*q}")
    for j in range(2):
        perm_tile(A, 96 + 32 * j, 64 + 32 * j)
        mfma_tile(A, 32, 8 + 4 * j, 64 + 32 * j, first=(j == 0))
    lds_reduce_d64(A, 32, 8, 7)
    A("v_cvt_pk_bf16_f32 v7, v7, v7")
    A("v_and_b32 v4, 7, v0")
    A("s_mov_b32 s89, 12288")
    A("v_mul_lo_u32 v4, v4, s89")
    A("v_lshrrev_b32 v5, 3, v0")
    A("v_lshlrev_b32 v5, 1, v5")
    A("v_add_u32 v4, v4, v5")
    A(f"s_add_u32 s22, s22, {WS_MOD}")
    A(f"buffer_store_short v7, v4, s[{SWS}:{SWS+3}], s22 offen")
    A.label("k1_end")
    A("s_endpgm")
    return name, 160, (96, 512, 32768)


def k_q(A):
    name = "k2_q_kernel"
    kernel_begin(A, name); A.endlabel = "k2_end"
    SW, SX, SWS = 8, 12, 16
    prologue(A, 64, dict(wq=SW, x=SX, ws=SWS))
    rs = 8192
    ln_stats(A, SX, 0, 32768)
    d64_voff(A, 6, rs, 4, 5)
    A("s_lshl_b32 s20, s3, 7")
    A(f"s_mul_i32 s21, s20, {rs}")
    A("s_lshl_b32 s22, s2, 7")
    A("s_add_u32 s21, s21, s22")
    for j in range(2):
        A(f"s_add_u32 s23, s21, {64*j*rs}")
        load_tile(A, SW, 6, 23, rs, 96 + 32 * j)
    for j in range(2):
        A(f"s_add_u32 s24, s20, {64*j}")
        h_frag(A, SX, 0, SWS, 0, 2048, 24, 8 + 4 * j, 32768, 16)
    A("s_waitcnt vmcnt(0)")
    for j in range(2):
        perm_tile(A, 96 + 32 * j, 64 + 32 * j)
        mfma_tile(A, 32, 8 + 4 * j, 64 + 32 * j, first=(j == 0))
    lds_reduce_d64(A, 32, 8, 7)
    A("v_cvt_pk_bf16_f32 v7, v7, v7")
    A("v_and_b32 v4, 7, v0")
    A("v_lshlrev_b32 v4, 13, v4")
    A("v_lshrrev_b32 v5, 3, v0")
    A("v_lshlrev_b32 v5, 1, v5")
    A("v_add_u32 v4, v4, v5")
    A(f"s_add_u32 s22, s22, {WS_Q}")
    A(f"buffer_store_short v7, v4, s[{SWS}:{SWS+3}], s22 offen")
    A.label("k2_end")
    A("s_endpgm")
    return name, 160, (64, 512, 32768 + 64)


def k_attn(A):
    name = "k3_attn_kernel"
    kernel_begin(A, name); A.endlabel = "k3_end"
    SK, SV, SWS = 8, 12, 16
    prologue(A, 256, dict(k=SK, v=SV, ws=SWS))
    A("s_lshr_b32 s20, s2, 3")
    A("s_and_b32 s21, s2, 7")
    A("s_lshl_b32 s22, s20, 12")
    A("s_lshl_b32 s23, s21, 7")
    A("s_add_u32 s22, s22, s23")
    A("s_lshl_b32 s23, s3, 5")
    A("s_add_u32 s22, s22, s23")
    A("s_add_u32 s22, s22, 3072")
    A("s_lshl_b32 s22, s22, 8")
    A("v_lshlrev_b32 v4, 8, v2")
    A("v_lshlrev_b32 v5, 4, v3")
    A("v_add_u32 v4, v4, v5")
    for kb in range(2):
        A(f"s_add_u32 s23, s22, {kb*4096}")
        for u in range(4):
            A(f"buffer_load_dwordx4 v[{32+16*kb+4*u}:{35+16*kb+4*u}], v4, s[{SK}:{SK+3}], s23 offen offset:{64*u} {NT}")
    A("v_lshlrev_b32 v6, 10, v3")
    A("v_lshlrev_b32 v5, 4, v2")
    A("v_add_u32 v6, v6, v5")
    load_tile(A, SV, 6, 22, 256, 96, rows=[0, 1, 2, 3, 16, 17, 18, 19])
    A("v_and_b32 v5, 7, v2")
    A("v_lshlrev_b32 v5, 8, v5")
    A("v_lshlrev_b32 v7, 4, v3")
    A("v_add_u32 v5, v5, v7")
    A("s_lshl_b32 s23, s20, 11")
    A(f"s_add_u32 s23, s23, {WS_Q}")
    for u in range(4):
        A(f"buffer_load_dwordx4 v[{16+4*u}:{19+4*u}], v5, s[{SWS}:{SWS+3}], s23 offen offset:{64*u}")
    A("s_waitcnt vmcnt(0)")
    for kb in range(2):
        for u in range(4):
            c = "0" if u == 0 else f"v[{8+4*kb}:{11+4*kb}]"
            A(f"v_mfma_f32_16x16x32_bf16 v[{8+4*kb}:{11+4*kb}], v[{32+16*kb+4*u}:{35+16*kb+4*u}], v[{16+4*u}:{19+4*u}], {c}")
    perm_tile(A, 96, 64)
    for j in range(8, 16, 2):
        rnd2(A, j, j + 1, 4)
        A(f"v_mul_f32 v{j}, 0x3db504f3, v{j}")
        A(f"v_mul_f32 v{j+1}, 0x3db504f3, v{j+1}")
        rnd2(A, j, j + 1, 4)
    A("v_max3_f32 v4, v8, v9, v10")
    A("v_max3_f32 v4, v4, v11, v12")
    A("v_max3_f32 v4, v4, v13, v14")
    A("v_max_f32 v4, v4, v15")
    rows_red(A, 4, 5, "v_max_f32")
    A("s_lshl_b32 s23, s3, 6")
    A("v_lshlrev_b32 v5, 2, v2")
    A("v_add_u32 v7, s23, v5")
    A("ds_write_b32 v7, v4 offset:16384")
    A("s_waitcnt lgkmcnt(0)")
    A("s_barrier")
    for w in range(4):
        A(f"ds_read_b32 v{16+w}, v5 offset:{16384+64*w}")
    A("s_waitcnt lgkmcnt(0)")
    A("v_max3_f32 v4, v16, v17, v18")
    A("v_max_f32 v4, v4, v19")
    for j in range(8, 16):
        A(f"v_sub_f32 v{j}, v{j}, v4")
        A(f"v_mul_f32 v{j}, {LOG2E:#x}, v{j}")
        A(f"v_exp_f32 v{j}, v{j}")
    A("v_add_f32 v20, v8, v9")
    for j in range(10, 16):
        A(f"v_add_f32 v20, v20, v{j}")
    rows_red(A, 20, 21, "v_add_f32")
    A("ds_write_b32 v7, v20 offset:16896")
    for q in range(4):
        A(f"v_cvt_pk_bf16_f32 v{16+q}, v{8+2*q}, v{9+2*q}")
    mfma_tile(A, 32, 16, 64, first=True)
    A("v_lshlrev_b32 v5, 8, v2")
    A("v_lshlrev_b32 v6, 4, v3")
    A("v_add_u32 v5, v5, v6")
    A("s_lshl_b32 s23, s3, 12")
    A("v_add_u32 v5, s23, v5")
    A("s_mov_b64 exec, 0xffffffff")
    for t in range(8):
        A(f"ds_write_b128 v5, v[{32+4*t}:{35+4*t}] offset:{32*t}")
    A("s_mov_b64 exec, -1")
    A("s_waitcnt lgkmcnt(0)")
    A("s_barrier")
    A("v_lshlrev_b32 v5, 4, v0")
    for w in range(4):
        A(f"ds_read_b128 v[{32+4*w}:{35+4*w}], v5 offset:{4096*w}")
    A("v_lshlrev_b32 v6, 2, v2")
    for w in range(4):
        A(f"ds_read_b32 v{16+w}, v6 offset:{16896+64*w}")
    A("s_waitcnt lgkmcnt(0)")
    for r in range(4):
        A(f"v_add_f32 v{32+r}, v{32+r}, v{36+r}")
        A(f"v_add_f32 v{40+r}, v{40+r}, v{44+r}")
        A(f"v_add_f32 v{32+r}, v{32+r}, v{40+r}")
    A("s_lshl_b32 s23, s2, 12")
    A(f"s_add_u32 s23, s23, {WS_OP}")
    A(f"buffer_store_dwordx4 v[32:35], v5, s[{SWS}:{SWS+3}], s23 offen")
    A("v_add_f32 v16, v16, v17")
    A("v_add_f32 v18, v18, v19")
    A("v_add_f32 v5, v16, v18")
    A("v_lshlrev_b32 v6, 3, v2")
    A("s_lshl_b32 s23, s2, 6")
    A(f"s_add_u32 s23, s23, {WS_ML}")
    A("s_cmp_lg_u32 s3, 0")
    A("s_cbranch_scc1 k3_end")
    A("s_mov_b64 exec, 0xff")
    A(f"buffer_store_dwordx2 v[4:5], v6, s[{SWS}:{SWS+3}], s23 offen")
    A.label("k3_end")
    A("s_endpgm")
    return name, 128, (256, 256, 17408)


def k_comb(A):
    name = "k4_comb_kernel"
    kernel_begin(A, name); A.endlabel = "k4_end"
    SWS = 16
    prologue(A, 256, dict(ws=SWS))
    A("s_lshr_b32 s20, s2, 3")
    A("s_and_b32 s21, s2, 7")
    A("s_lshl_b32 s22, s20, 9")
    A("s_lshl_b32 s23, s21, 3")
    A("s_add_u32 s22, s22, s23")
    A(f"s_add_u32 s22, s22, {WS_ML}")
    A("v_mov_b32 v4, 0")
    for s in range(8):
        A(f"buffer_load_dwordx2 v[{8+2*s}:{9+2*s}], v4, s[{SWS}:{SWS+3}], s22 offen offset:{64*s}")
    A("s_lshl_b32 s22, s20, 15")
    A("s_lshl_b32 s23, s21, 2")
    A("s_add_u32 s22, s22, s23")
    A(f"s_add_u32 s22, s22, {WS_OP}")
    A("v_lshlrev_b32 v4, 5, v0")
    for s in range(8):
        A(f"s_add_u32 s23, s22, {4096*s}")
        A(f"buffer_load_dword v{24+s}, v4, s[{SWS}:{SWS+3}], s23 offen")
    A("s_waitcnt vmcnt(0)")
    A("v_max3_f32 v5, v8, v10, v12")
    A("v_max3_f32 v5, v5, v14, v16")
    A("v_max3_f32 v5, v5, v18, v20")
    A("v_max_f32 v5, v5, v22")
    A("v_mov_b32 v6, 0")
    A("v_mov_b32 v7, 0")
    for s in range(8):
        A(f"v_sub_f32 v{8+2*s}, v{8+2*s}, v5")
        A(f"v_mul_f32 v{8+2*s}, {LOG2E:#x}, v{8+2*s}")
        A(f"v_exp_f32 v{8+2*s}, v{8+2*s}")
        A(f"v_fmac_f32 v6, v{8+2*s}, v{9+2*s}")
        A(f"v_fmac_f32 v7, v{8+2*s}, v{24+s}")
    A("v_rcp_f32 v5, v6")
    A("v_mul_f32 v7, v7, v5")
    A("v_cvt_pk_bf16_f32 v7, v7, v7")
    A("s_lshl_b32 s22, s2, 8")
    A(f"s_add_u32 s22, s22, {WS_O}")
    A("v_lshlrev_b32 v4, 1, v0")
    A(f"buffer_store_short v7, v4, s[{SWS}:{SWS+3}], s22 offen")
    A.label("k4_end")
    A("s_endpgm")
    return name, 32, (256, 128, 0)


def k_part(A, name, wname, K, src_off, dst_off, nks):
    kernel_begin(A, name); A.endlabel = name + "_end"
    SW, SWS = 8, 16
    prologue(A, nks * 16, {wname: SW, "ws": SWS})
    rs = 2048
    d64_voff(A, 6, rs, 4, 5)
    A("s_lshr_b32 s25, s2, 4")
    A("s_and_b32 s26, s2, 15")
    A("s_lshl_b32 s20, s25, 9")
    A("s_lshl_b32 s21, s3, 6")
    A("s_add_u32 s20, s20, s21")
    A(f"s_mul_i32 s21, s20, {rs}")
    A("s_lshl_b32 s22, s26, 7")
    A("s_add_u32 s21, s21, s22")
    load_tile(A, SW, 6, 21, rs, 96)
    a_frag_buf(A, SWS, src_off, K, 20, 8, 4)
    A("s_waitcnt vmcnt(0)")
    perm_tile(A, 96, 64)
    mfma_tile(A, 32, 8, 64, first=True)
    lds_reduce_d64(A, 32, 8, 7)
    A("v_and_b32 v4, 7, v0")
    A("v_lshlrev_b32 v4, 12, v4")
    A("v_lshrrev_b32 v5, 3, v0")
    A("v_lshlrev_b32 v5, 2, v5")
    A("v_add_u32 v4, v4, v5")
    A("s_lshl_b32 s22, s25, 15")
    A("s_lshl_b32 s23, s26, 8")
    A("s_add_u32 s22, s22, s23")
    A(f"s_add_u32 s22, s22, {dst_off}")
    A(f"buffer_store_dword v7, v4, s[{SWS}:{SWS+3}], s22 offen")
    A.label(name + "_end")
    A("s_endpgm")
    return name, 128, (nks * 16, 512, 32768)


def k_red(A, name, src_off, nks, gate_off, res_name, res_off, dst_name, dst_off):
    kernel_begin(A, name); A.endlabel = name + "_end"
    SR, SD, SWS = 8, 12, 16
    bufs = {"ws": SWS}
    if res_name != "ws": bufs[res_name] = SR
    else: SR = SWS
    if dst_name != "ws": bufs[dst_name] = SD
    else: SD = SWS
    prologue(A, 32, bufs)
    A("s_lshl_b32 s20, s2, 8")
    A("v_add_u32 v4, s20, v0")
    A("v_lshlrev_b32 v5, 2, v4")
    for s in range(nks):
        A(f"s_mov_b32 s21, {src_off + 32768*s}")
        A(f"buffer_load_dword v{16+s}, v5, s[{SWS}:{SWS+3}], s21 offen")
    A("v_lshlrev_b32 v5, 1, v4")
    A(f"s_mov_b32 s21, {res_off}")
    A(f"buffer_load_ushort v8, v5, s[{SR}:{SR+3}], s21 offen")
    A("v_lshrrev_b32 v6, 10, v4")
    A("s_mov_b32 s89, 12288")
    A("v_mul_lo_u32 v6, v6, s89")
    A("v_and_b32 v7, 1023, v4")
    A("v_lshlrev_b32 v7, 1, v7")
    A("v_add_u32 v6, v6, v7")
    A(f"s_mov_b32 s21, {WS_MOD + gate_off}")
    A(f"buffer_load_ushort v9, v6, s[{SWS}:{SWS+3}], s21 offen")
    A("s_waitcnt vmcnt(0)")
    for s in range(1, nks):
        A(f"v_add_f32 v16, v16, v{16+s}")
    rnd1(A, 16)
    A("v_lshlrev_b32 v8, 16, v8")
    A("v_lshlrev_b32 v9, 16, v9")
    A("v_mul_f32 v16, v16, v9")
    rnd1(A, 16)
    A("v_add_f32 v16, v16, v8")
    A("v_cvt_pk_bf16_f32 v16, v16, v16")
    A(f"s_mov_b32 s21, {dst_off}")
    A(f"buffer_store_short v16, v5, s[{SD}:{SD+3}], s21 offen")
    A.label(name + "_end")
    A("s_endpgm")
    return name, 48, (32, 256, 0)


def k_gu(A):
    name = "k7_gu_kernel"
    kernel_begin(A, name); A.endlabel = "k7_end"
    SG, SU, SWS = 8, 12, 16
    prologue(A, 56, dict(wg=SG, wu=SU, ws=SWS))
    rs = 7168
    ln_stats(A, SWS, WS_X1, 65536)
    d64_voff(A, 6, rs, 4, 5)
    A("s_lshl_b32 s20, s3, 7")
    A(f"s_mul_i32 s21, s20, {rs}")
    A("s_lshl_b32 s22, s2, 7")
    A("s_add_u32 s21, s21, s22")
    for m, S in enumerate((SG, SU)):
        for j in range(2):
            A(f"s_add_u32 s23, s21, {64*j*rs}")
            load_tile(A, S, 6, 23, rs, 128 + 32 * (2 * m + j))
    for j in range(2):
        A(f"s_add_u32 s24, s20, {64*j}")
        h_frag(A, SWS, WS_X1, SWS, 3 * 2048, 4 * 2048, 24, 8 + 4 * j, 65536, 16)
    A("s_waitcnt vmcnt(0)")
    for m in range(2):
        for j in range(2):
            n = 2 * m + j
            perm_tile(A, 128 + 32 * n, 96 + 32 * n)
            mfma_tile(A, 32 + 32 * m, 8 + 4 * j, 96 + 32 * n, first=(j == 0))
    lds_reduce_d64(A, 32, 8, 7, ldsbase=0)
    lds_reduce_d64(A, 64, 8, 8, ldsbase=32768)
    rnd2(A, 7, 8, 4)
    silu(A, 7, 4)
    rnd1(A, 7)
    A("v_mul_f32 v7, v7, v8")
    A("v_cvt_pk_bf16_f32 v7, v7, v7")
    A("v_and_b32 v4, 7, v0")
    A("s_mov_b32 s89, 7168")
    A("v_mul_lo_u32 v4, v4, s89")
    A("v_lshrrev_b32 v5, 3, v0")
    A("v_lshlrev_b32 v5, 1, v5")
    A("v_add_u32 v4, v4, v5")
    A(f"s_add_u32 s22, s22, {WS_ACT}")
    A(f"buffer_store_short v7, v4, s[{SWS}:{SWS+3}], s22 offen")
    A.label("k7_end")
    A("s_endpgm")
    return name, 256, (56, 512, 65536 + 64)


def build(extra_empty=0):
    A = Asm()
    A.raw('.amdgcn_target "amdgcn-amd-amdhsa--gfx950"')
    ks = []
    ks.append(k_mod(A))
    ks.append(k_q(A))
    ks.append(k_attn(A))
    ks.append(k_comb(A))
    ks.append(k_part(A, "k5_wo_kernel", "wo", 4096, WS_O, WS_P4, 8))
    ks.append(k_red(A, "k6_red_kernel", WS_P4, 8, 2 * 2048, "x", 0, "ws", WS_X1))
    ks.append(k_gu(A))
    ks.append(k_part(A, "k8_wd_kernel", "wd", 3584, WS_ACT, WS_P6, 7))
    ks.append(k_red(A, "k9_red_kernel", WS_P6, 7, 5 * 2048, "ws", WS_X1, "out", 0))
    if extra_empty:
        kernel_begin(A, "k10_empty_kernel")
        A("s_endpgm")
    for name, nv, _ in ks:
        kernel_desc(A, name, nv, 96)
    if extra_empty:
        kernel_desc(A, "k10_empty_kernel", 8, 16)
    hdr = []
    for name, nv, (g, b, lds) in ks:
        hdr.append(f"; @launch kernel={name} grid=({g},1,1) block=({b},1,1) lds={lds}")
    for i in range(extra_empty):
        hdr.append(f"; @launch kernel=k10_empty_kernel grid=(256,1,1) block=(256,1,1) lds=0")
    return "\n".join(hdr) + "\n" + A.text()


if __name__ == "__main__":
    open("base.s", "w").write(build())
    open("base_e10.s", "w").write(build(extra_empty=10))
```

```python
import gen_base
from gen_base import *

def k_stream(A, flags, name="k0_stream_kernel", nld=12):
    kernel_begin(A, name); A.endlabel = name+"_end"
    SK, SV = 8, 12
    prologue(A, 256, dict(k=SK, v=SV))
    A("s_lshr_b32 s20, s2, 3")
    A("s_lshl_b32 s20, s20, 20")
    A("s_and_b32 s21, s2, 7")
    A(f"s_mul_i32 s21, s21, {96*1024}")
    A("s_add_u32 s20, s20, s21")
    A(f"s_mul_i32 s21, s3, {12*1024}")
    A("s_add_u32 s20, s20, s21")
    A("v_lshlrev_b32 v4, 4, v1")
    for i in range(nld):
        A(f"s_add_u32 s22, s20, {1024*i}")
        A(f"buffer_load_dwordx4 v[{8+4*i}:{11+4*i}], v4, s[{SK}:{SK+3}], s22 offen {flags}")
        A(f"buffer_load_dwordx4 v[{8+48+4*i}:{11+48+4*i}], v4, s[{SV}:{SV+3}], s22 offen {flags}")
    A("s_waitcnt vmcnt(0)")
    A.label(name+"_end")
    A("s_endpgm")
    return name, 128, (256, 512, 0)

def build(flags, first=True, nld=12):
    A = Asm()
    A.raw('.amdgcn_target "amdgcn-amd-amdhsa--gfx950"')
    ks = []
    st = k_stream(A, flags, nld=nld)
    ks.append(k_mod(A))
    ks.append(k_q(A))
    ks.append(k_attn(A))
    ks.append(k_comb(A))
    ks.append(k_part(A, "k5_wo_kernel", "wo", 4096, WS_O, WS_P4, 8))
    ks.append(k_red(A, "k6_red_kernel", WS_P4, 8, 2 * 2048, "x", 0, "ws", WS_X1))
    ks.append(k_gu(A))
    ks.append(k_part(A, "k8_wd_kernel", "wd", 3584, WS_ACT, WS_P6, 7))
    ks.append(k_red(A, "k9_red_kernel", WS_P6, 7, 5 * 2048, "ws", WS_X1, "out", 0))
    ks = [st]+ks if first else ks+[st]
    for name, nv, _ in ks:
        kernel_desc(A, name, nv, 96)
    hdr = []
    for name, nv, (g, b, lds) in ks:
        hdr.append(f"; @launch kernel={name} grid=({g},1,1) block=({b},1,1) lds={lds}")
    return "\n".join(hdr) + "\n" + A.text()

open("cal_nt_f.s","w").write(build("nt",True))
open("cal_df_f.s","w").write(build("",True))
open("cal_nt_l.s","w").write(build("nt",False))
open("cal_df_l.s","w").write(build("",False))
open("cal_nt_f1.s","w").write(build("nt",True,1))
```

```python
import sys
from asmgen import *

WS_EPOCH = 0
WS_H = 0x010000
WS_X1 = 0x020000
WS_SB = 0x030000
WS_CB = 0x038000
WS_Q = 0x040000
WS_O = 0x060000
WS_ACT = 0x080000
WS_OPD = 0x100000
WS_OPM = 0x200000
WS_MP = 0x300000
WS_XP = 0x600000
WS_YP = 0x700000
GOFF = 0x800000
WS_TS = 0x1000000

L_CNT = 0
C_ST, C_KV, C_WQ, C_C, C_G, C_G2, C_A, C_WO, C_WD, E_M0, E_H, E_AT, E_WO, E_X1, E_WD, E_M1, E_S, E_Q = [4 * k for k in range(18)]
L_STAT = 256
L_ST2 = 512
L_AST = 1024
L_QF = 2048
L_RED = 6144
L_ARED = L_RED + 16384
L_CRED = L_ARED + 16384
L_CRED2 = L_CRED
LDS_BYTES = L_CRED2 + 16384

R0, R1, R2 = 32, 64, 96
LOG2E = 0x3fb8aa3b

S_X, S_K, S_V, S_WQ, S_WO, S_WG, S_WU, S_WD, S_C, S_WM, S_OUT, S_DBG, S_WSP = 4, 6, 8, 10, 12, 16, 18, 20, 22, 24, 26, 28, 30
WS = 32
D1, D2, D3 = 36, 40, 44
SJ, SI, SW, STAG, SFF, SLO, SHI, SHM = 48, 49, 50, 51, 52, 53, 54, 55
T0, T1, T2, T3, T4, T5, T6, T7 = 56, 57, 58, 59, 60, 61, 62, 63
SEP = 64
SCNT = 65
SB_ = 66
STAMP0 = 70

VL, VC, VG, VTAG = 0, 1, 2, 3


class P:
    WIN_A = 6
    WIN_G = 3
    WIN_C = 8
    TRIG_A = 3
    TRIG_G = 2
    NLOCAL = 200
    LIMIT = 200000
    LLIMIT = 4000000
    diag = False
    local = True
    prefetch = True


class Gen(Asm):
    def __init__(self, p):
        super().__init__()
        self.p = p
        self.nstamp = 0

    def srd(self, d, ptr, size):
        self(f"s_mov_b32 s{d}, s{ptr}")
        self(f"s_mov_b32 s{d+1}, s{ptr+1}")
        self(f"s_mov_b32 s{d+2}, {size}")
        self(f"s_mov_b32 s{d+3}, 0x20000")

    def stamp(self, k):
        if self.p.diag:
            self(f"s_memrealtime s[{STAMP0+2*k}:{STAMP0+2*k+1}]")

    def stamps_out(self, n=14):
        if not self.p.diag:
            return
        self("s_waitcnt lgkmcnt(0)")
        self(f"s_lshl_b32 s{T0}, s2, 4")
        self(f"s_add_u32 s{T0}, s{T0}, s{SW}")
        self(f"s_lshl_b32 s{T0}, s{T0}, 6")
        self(f"s_add_u32 s{T0}, s{T0}, {WS_TS}")
        self("s_mov_b64 exec, 1")
        self("v_mov_b32 v5, 0")
        for k in range(n):
            self(f"v_mov_b32 v4, s{STAMP0+2*k}")
            self(f"buffer_store_dword v4, v5, s[{WS}:{WS+3}], s{T0} offen offset:{4*k}")
        self("s_mov_b64 exec, -1")

    def stamps_init(self, n=14):
        if self.p.diag:
            for k in range(1, n):
                self(f"s_mov_b32 s{STAMP0+2*k}, 0")

    def init_sync(self):
        self("s_waitcnt lgkmcnt(0)")
        self(f"s_add_u32 s{STAG}, s{SEP}, 1")
        self(f"s_and_b32 s{STAG}, s{STAG}, 0xff")
        self(f"v_mov_b32 v{VTAG}, s{STAG}")
        self("s_barrier")

    def signal(self, cnt, t0=4, t1=5):
        self(f"v_mov_b32 v{t0}, {L_CNT+cnt}")
        self(f"v_mov_b32 v{t1}, 1")
        self("s_mov_b64 exec, 1")
        self(f"ds_add_u32 v{t0}, v{t1}")
        self("s_mov_b64 exec, -1")

    def wait_cnt(self, cnt, n, t0=4, t1=5, sleep=0):
        lab = self.newlabel("LW")
        self(f"v_mov_b32 v{t0}, {L_CNT+cnt}")
        self(f"s_mov_b32 s{SCNT}, 0")
        self.label(lab)
        if sleep:
            self(f"s_sleep {sleep}")
        self(f"ds_read_b32 v{t1}, v{t0}")
        self(f"s_add_u32 s{SCNT}, s{SCNT}, 1")
        self(f"s_cmp_gt_u32 s{SCNT}, {self.p.LLIMIT}")
        self("s_cbranch_scc1 L_end")
        self("s_waitcnt lgkmcnt(0)")
        self(f"v_readfirstlane_b32 s{T7}, v{t1}")
        self(f"s_cmp_lt_u32 s{T7}, {n}")
        self(f"s_cbranch_scc1 {lab}")

    def loads(self, lst, win, already=0):
        out = already
        for it in lst:
            n = 1
            if isinstance(it, tuple):
                it, n = it
            if win is not None and out + n > win:
                self(f"s_waitcnt vmcnt({max(win-n,0)})")
                out = max(win - n, 0)
            self(it)
            out += n
        return out

    def tile_loads(self, srd, voff, sbase, rs, dst, rows=None, flags="nt", tmp=T6):
        r = []
        for i in range(8):
            row = i if rows is None else rows[i]
            off = row * rs
            if off < 4096:
                r.append(f"buffer_load_dwordx4 v[{dst+4*i}:{dst+4*i+3}], v{voff}, s[{srd}:{srd+3}], s{sbase} offen offset:{off} {flags}")
            else:
                r.append(f"s_add_u32 s{tmp}, s{sbase}, {off}\n"
                         f"buffer_load_dwordx4 v[{dst+4*i}:{dst+4*i+3}], v{voff}, s[{srd}:{srd+3}], s{tmp} offen {flags}")
        return r

    def perm(self, src, dst):
        for d in range(4):
            for q in range(4):
                a = src + 4 * (2 * q) + d
                b = src + 4 * (2 * q + 1) + d
                self(f"v_perm_b32 v{dst+4*(2*d)+q}, v{b}, v{a}, s{SLO}")
                self(f"v_perm_b32 v{dst+4*(2*d+1)+q}, v{b}, v{a}, s{SHI}")

    def mfma(self, acc, af, F, first):
        for t in range(8):
            c = "0" if first else f"v[{acc+4*t}:{acc+4*t+3}]"
            self(f"v_mfma_f32_16x16x32_bf16 v[{acc+4*t}:{acc+4*t+3}], v[{af}:{af+3}], v[{F+4*t}:{F+4*t+3}], {c}")

    def diag_add(self, acc):
        for t in range(4):
            for r in range(4):
                x1, x2 = acc + 4 * t + r, acc + 4 * (t + 4) + r
                self(f"v_permlane32_swap_b32 v{x1}, v{x2}")
        for t in range(4):
            for r in range(4):
                x1, x2 = acc + 4 * t + r, acc + 4 * (t + 4) + r
                self(f"v_add_f32_dpp v{x1}, v{x2}, v{x1} row_ror:8 row_mask:0xf bank_mask:0xf")
        for t in range(2):
            for r in range(4):
                self(f"v_mov_b32_dpp v{acc+4*t+r}, v{acc+4*(t+2)+r} row_ror:8 row_mask:0xf bank_mask:0xc")

    def tagf(self, regs):
        for r in regs:
            self(f"v_bfi_b32 v{r}, s{SFF}, v{VTAG}, v{r}")

    def pub(self, quad, voff, sbase, off=0, local=False, tmp=T6):
        o = f" offset:{off}" if off else ""
        if local and self.p.local:
            self(f"buffer_store_dwordx4 v[{quad}:{quad+3}], v{voff}, s[{WS}:{WS+3}], s{sbase} offen{o}")
            return 1
        elif local:
            self(f"s_add_u32 s{tmp}, s{sbase}, {GOFF}")
            self(f"buffer_store_dwordx4 v[{quad}:{quad+3}], v{voff}, s[{WS}:{WS+3}], s{tmp} offen{o} sc1")
            return 1
        self(f"buffer_store_dwordx4 v[{quad}:{quad+3}], v{voff}, s[{WS}:{WS+3}], s{sbase} offen{o} sc1")
        return 1

    def pub_g(self, quad, voff, sbase, off=0, tmp=T6):
        if not self.p.local:
            return 0
        o = f" offset:{off}" if off else ""
        self(f"s_add_u32 s{tmp}, s{sbase}, {GOFF}")
        self(f"buffer_store_dwordx4 v[{quad}:{quad+3}], v{voff}, s[{WS}:{WS+3}], s{tmp} offen{o} sc1")
        return 1

    def poll(self, lds, sbase, local=False, acc=4, execs=None, pre=None):
        lab = self.newlabel("LP")
        self(f"s_mov_b32 s{SCNT}, 0")
        if local and not self.p.local:
            self(f"s_add_u32 s{SB_}, s{sbase}, {GOFF}")
        elif not local:
            self(f"s_mov_b32 s{SB_}, s{sbase}")
        self.label(lab)
        if local and self.p.local:
            self(f"s_cmp_lt_u32 s{SCNT}, {self.p.NLOCAL}")
            self(f"s_cselect_b32 s{SB_}, 0, {GOFF}")
            self(f"s_add_u32 s{SB_}, s{SB_}, s{sbase}")
        if pre:
            pre()
        for k, (dst, voff, off, ex) in enumerate(lds):
            sb = SB_
            if ex is not None:
                self(f"s_add_u32 s{T6}, s{SB_}, {ex}")
                sb = T6
            o = f" offset:{off}" if off else ""
            if execs and k in execs:
                self(execs[k])
            self(f"buffer_load_dwordx4 v[{dst}:{dst+3}], v{voff}, s[{WS}:{WS+3}], s{sb} offen{o} sc1")
            if execs and k in execs:
                self("s_mov_b64 exec, -1")
        self(f"s_add_u32 s{SCNT}, s{SCNT}, 1")
        self(f"s_cmp_gt_u32 s{SCNT}, {self.p.LIMIT}")
        self("s_cbranch_scc1 L_end")
        regs = []
        for k, (dst, voff, off, ex) in enumerate(lds):
            self(f"s_waitcnt vmcnt({len(lds)-1-k})")
            for q in range(4):
                self(f"v_xor_b32 v{dst+q}, v{VTAG}, v{dst+q}")
            if k == 0:
                self(f"v_or3_b32 v{acc}, v{dst}, v{dst+1}, v{dst+2}")
                self(f"v_or_b32 v{acc}, v{acc}, v{dst+3}")
            else:
                self(f"v_or3_b32 v{acc}, v{acc}, v{dst}, v{dst+1}")
                self(f"v_or3_b32 v{acc}, v{acc}, v{dst+2}, v{dst+3}")
        self(f"v_and_b32 v{acc}, 0xff, v{acc}")
        self(f"v_cmp_ne_u32 vcc, 0, v{acc}")
        self(f"s_cbranch_vccnz {lab}")

    def rnd(self, a):
        self(f"v_cvt_pk_bf16_f32 v{a}, v{a}, v{a}")
        self(f"v_and_b32 v{a}, 0xffff0000, v{a}")

    def rnd2(self, a, b, t):
        self(f"v_cvt_pk_bf16_f32 v{t}, v{a}, v{b}")
        self(f"v_lshlrev_b32 v{a}, 16, v{t}")
        self(f"v_and_b32 v{b}, 0xffff0000, v{t}")

    def rnd_tag(self, a):
        self(f"v_cvt_pk_bf16_f32 v{a}, v{a}, v{a}")
        self(f"v_and_or_b32 v{a}, v{a}, s{SHM}, v{VTAG}")

    def bfly(self, v, t, op, bits=(3, 4, 5)):
        for b in bits:
            if b == 0:
                self(f"{op}_dpp v{v}, v{v}, v{v} quad_perm:[1,0,3,2] row_mask:0xf bank_mask:0xf")
            elif b == 1:
                self(f"{op}_dpp v{v}, v{v}, v{v} quad_perm:[2,3,0,1] row_mask:0xf bank_mask:0xf")
            elif b == 2:
                self(f"{op}_dpp v{v}, v{v}, v{v} row_half_mirror row_mask:0xf bank_mask:0xf")
            elif b == 3:
                self(f"{op}_dpp v{v}, v{v}, v{v} row_ror:8 row_mask:0xf bank_mask:0xf")
            elif b == 4:
                self(f"v_mov_b32 v{t}, v{v}")
                self(f"v_permlane16_swap_b32 v{v}, v{t}")
                self(f"{op} v{v}, v{v}, v{t}")
            elif b == 5:
                self(f"v_mov_b32 v{t}, v{v}")
                self(f"v_permlane32_swap_b32 v{v}, v{t}")
                self(f"{op} v{v}, v{v}, v{t}")

    def packed_red2(self, A, B):
        for q in range(4):
            self(f"v_add_f32_dpp v{A+q}, v{A+q}, v{A+q} row_ror:8 row_mask:0xf bank_mask:0xf")
            self(f"v_add_f32_dpp v{B+q}, v{B+q}, v{B+q} row_ror:8 row_mask:0xf bank_mask:0xf")
        for q in range(4):
            self(f"v_permlane32_swap_b32 v{A+q}, v{B+q}")
        for q in range(4):
            self(f"v_add_f32 v{A+q}, v{A+q}, v{B+q}")
        self(f"v_permlane16_swap_b32 v{A}, v{A+1}")
        self(f"v_permlane16_swap_b32 v{A+2}, v{A+3}")
        self(f"v_add_f32 v{A}, v{A}, v{A+1}")
        self(f"v_add_f32 v{A+2}, v{A+2}, v{A+3}")
        self(f"v_permlane32_swap_b32 v{A}, v{A+2}")

    def packed_red1(self, A, op="v_add_f32"):
        for q in range(4):
            self(f"{op}_dpp v{A+q}, v{A+q}, v{A+q} row_ror:8 row_mask:0xf bank_mask:0xf")
        self(f"v_permlane32_swap_b32 v{A}, v{A+2}")
        self(f"v_permlane32_swap_b32 v{A+1}, v{A+3}")
        self(f"{op} v{A}, v{A}, v{A+2}")
        self(f"{op} v{A+1}, v{A+1}, v{A+3}")
        self(f"v_permlane16_swap_b32 v{A}, v{A+1}")
        self(f"{op} v{A}, v{A}, v{A+1}")

    def quad_gather(self, src, dst):
        for q in range(4):
            self(f"v_mov_b32_dpp v{dst+q}, v{src} quad_perm:[{q},{q},{q},{q}] row_mask:0xf bank_mask:0xf")

    def silu(self, x, t):
        self(f"v_mul_f32 v{t}, 0xbfb8aa3b, v{x}")
        self(f"v_exp_f32 v{t}, v{t}")
        self(f"v_add_f32 v{t}, 1.0, v{t}")
        self(f"v_rcp_f32 v{t}, v{t}")
        self(f"v_mul_f32 v{x}, v{x}, v{t}")

    def d64_voff(self, vd, rs, t0):
        self(f"v_lshrrev_b32 v{t0}, 3, v{VC}")
        self(f"v_lshl_add_u32 v{t0}, v{t0}, 2, v{VG}")
        self(f"s_mov_b32 s{T6}, {8*rs}")
        self(f"v_mul_lo_u32 v{t0}, v{t0}, s{T6}")
        self(f"v_and_b32 v{vd}, 7, v{VC}")
        self(f"v_lshl_add_u32 v{vd}, v{vd}, 4, v{t0}")

    def afrag_voff(self, vd, rowbytes, esz, t0):
        self(f"v_lshrrev_b32 v{t0}, 3, v{VC}")
        self(f"v_lshl_add_u32 v{t0}, v{t0}, 2, v{VG}")
        self(f"v_lshlrev_b32 v{t0}, {3 + (esz.bit_length()-1)}, v{t0}")
        self(f"v_and_b32 v{vd}, 7, v{VC}")
        self(f"s_mov_b32 s{T6}, {rowbytes}")
        self(f"v_mul_lo_u32 v{vd}, v{vd}, s{T6}")
        self(f"v_add_u32 v{vd}, v{vd}, v{t0}")

    def pack8(self, src, dst):
        for q in range(4):
            self(f"v_perm_b32 v{dst+q}, v{src+2*q+1}, v{src+2*q}, s{SHI}")

    def red_lane(self, vb, vcol, t):
        self(f"v_bfe_u32 v{t}, v{VL}, 2, 1")
        self(f"v_lshl_add_u32 v{vb}, v{t}, 2, v{VG}")
        self(f"v_and_b32 v{vcol}, 3, v{VL}")


EX_V = "0x0011001100110011"


def set_exec64(A, val):
    v = int(val, 16)
    A(f"s_mov_b32 exec_lo, {v & 0xffffffff:#x}")
    A(f"s_mov_b32 exec_hi, {v >> 32:#x}")


def ln_finish(A, mean, var, t):
    A.rnd2(mean, var, t)
    A(f"v_add_f32 v{var}, 0x3727c5ac, v{var}")
    A.rnd(var)
    A(f"v_sqrt_f32 v{var}, v{var}")
    A.rnd(var)
    A(f"v_rcp_f32 v{t}, v{var}")
    A(f"v_fma_f32 v{var}, -v{var}, v{t}, 1.0")
    A(f"v_fma_f32 v{var}, v{var}, v{t}, v{t}")


def m_stage(A, m, stage_reg, acc, af, vst, sbase_mp):
    A.perm(stage_reg, R0)
    A.mfma(acc, af, R0, True)
    A.diag_add(acc)
    A.tagf(range(acc, acc + 8))
    A(f"s_add_u32 s{T5}, s{sbase_mp}, {WS_MP + m * 8 * 131072}")
    n = 0
    n += A.pub(acc, vst, T5, 0, local=True)
    n += A.pub(acc + 4, vst, T5, 16, local=True)
    n += A.pub_g(acc, vst, T5, 0)
    n += A.pub_g(acc + 4, vst, T5, 16)
    return n


def reduce_gather(A, sbase, nload, dst=8, voff=6, last_half=False):
    A(f"v_lshlrev_b32 v{voff}, 4, v{VL}")
    lds = [(dst + 4 * u, voff, 1024 * u, None) for u in range(nload)]
    execs = None
    pre = None
    if last_half:
        execs = {nload - 1: "s_mov_b32 exec_lo, -1\ns_mov_b32 exec_hi, 0"}

        def pre():
            for q in range(4):
                A(f"v_mov_b32 v{dst+4*(nload-1)+q}, v{VTAG}")
    A.poll(lds, sbase, local=True, acc=4, execs=execs, pre=pre)


def t128_stage(A, src_base, kspec, cnt, lred, dst_region, pidx_sreg, nm):
    A.poll([(8, 6, 0, None), (12, 6, 16, None)], T3, local=False, acc=4)
    A.stamp(nm)
    A.pack8(8, 16)
    A.mfma(R1, 16, R0, True)
    A(f"v_lshlrev_b32 v6, 8, v{VC}")
    A(f"v_lshl_add_u32 v6, v{VG}, 4, v6")
    A(f"s_lshl_b32 s{T0}, s{SW}, 12")
    A(f"s_add_u32 s{T0}, s{T0}, {lred}")
    A(f"v_add_u32 v6, s{T0}, v6")
    A("s_mov_b32 exec_lo, -1\ns_mov_b32 exec_hi, 0")
    for t in range(8):
        A(f"ds_write_b128 v6, v[{R1+4*t}:{R1+4*t+3}] offset:{32*t}")
    A("s_mov_b64 exec, -1")
    A.signal(cnt)
    A.wait_cnt(cnt, 4)
    A(f"s_lshl_b32 s{T0}, s{SW}, 10")
    A(f"v_lshlrev_b32 v6, 4, v{VL}")
    A(f"v_add_u32 v6, s{T0}, v6")
    for u in range(4):
        A(f"ds_read_b128 v[{8+4*u}:{11+4*u}], v6 offset:{lred + 4096*u}")
    A(f"v_lshrrev_b32 v7, 3, v{VL}")
    A(f"v_lshlrev_b32 v7, 12, v7")
    A(f"v_and_b32 v5, 1, v{VL}")
    A(f"v_lshl_add_u32 v7, v5, 6, v7")
    A(f"v_bfe_u32 v5, v{VL}, 1, 2")
    A(f"v_lshl_add_u32 v7, v5, 4, v7")
    A(f"s_lshl_b32 s{T0}, s{SJ}, 17")
    A(f"s_lshl_b32 s{T1}, s{SW}, 15")
    A(f"s_add_u32 s{T0}, s{T0}, s{T1}")
    A(f"s_lshl_b32 s{T1}, s{pidx_sreg}, 7")
    A(f"s_add_u32 s{T0}, s{T0}, s{T1}")
    A(f"s_add_u32 s{T0}, s{T0}, {dst_region}")
    A("s_waitcnt lgkmcnt(0)")
    for q in range(4):
        A(f"v_add_f32 v{8+q}, v{8+q}, v{12+q}")
        A(f"v_add_f32 v{16+q}, v{16+q}, v{20+q}")
    for q in range(4):
        A(f"v_add_f32 v{8+q}, v{8+q}, v{16+q}")
    A.tagf(range(8, 12))
    A.pub(8, 7, T0, 0, local=True)
    A.pub_g(8, 7, T0, 0)
    A.stamp(nm + 1)


def role_C(A):
    p = A.p
    A.label("L_C")
    A.srd(D1, S_WM, 12582912)
    A.srd(D2, S_C, 16384)
    A(f"s_cmp_ge_u32 s{SW}, 2")
    A("s_cbranch_scc1 L_C23")
    A(f"s_lshr_b32 s{T0}, s{SI}, 2")
    A(f"s_and_b32 s{T1}, s{SI}, 1")
    A(f"s_bfe_u32 s{T2}, s{SI}, 0x10001")
    A(f"s_lshl_b32 s{T3}, s{T0}, 1")
    A(f"s_add_u32 s{T3}, s{T3}, s{SW}")
    A.afrag_voff(6, 2048, 2, 5)
    A(f"s_lshl_b32 s{T4}, s{T3}, 7")
    A(f"buffer_load_dwordx4 v[8:11], v6, s[{D2}:{D2+3}], s{T4} offen")
    A.d64_voff(7, 12288, 5)
    A(f"s_mul_i32 s67, s{T3}, {64*12288}")
    A(f"s_lshl_b32 s{T4}, s{SJ}, 8")
    A(f"s_add_u32 s67, s67, s{T4}")
    A(f"s_lshl_b32 s{T4}, s{T1}, 7")
    A(f"s_add_u32 s67, s67, s{T4}")
    A(f"s_lshl_b32 s{T4}, s{T2}, 11")
    A(f"s_add_u32 s{T4}, s67, s{T4}")
    A.loads(A.tile_loads(D1, 7, T4, 12288, R1), None)
    A(f"s_lshl_b32 s68, s{SJ}, 17")
    A(f"s_lshl_b32 s{T4}, s{T1}, 16")
    A(f"s_add_u32 s68, s68, s{T4}")
    A(f"s_lshl_b32 s{T4}, s{T2}, 11")
    A(f"s_add_u32 s68, s68, s{T4}")
    A(f"s_lshl_b32 s{T4}, s{T3}, 7")
    A(f"s_add_u32 s68, s68, s{T4}")
    A(f"s_mov_b32 s69, s{T2}")
    A(f"v_and_b32 v4, 7, v{VC}")
    A(f"v_lshrrev_b32 v5, 1, v{VG}")
    A(f"v_lshl_add_u32 v4, v4, 1, v5")
    A(f"v_lshlrev_b32 v24, 12, v4")
    A(f"v_and_b32 v4, 1, v{VG}")
    A(f"v_lshl_add_u32 v24, v4, 6, v24")
    A(f"v_lshrrev_b32 v4, 3, v{VC}")
    A(f"v_lshl_add_u32 v24, v4, 5, v24")
    A.init_sync()
    A("s_waitcnt vmcnt(8)")
    for d in range(4):
        A(f"v_lshlrev_b32 v{12+2*d}, 16, v{8+d}")
        A(f"v_and_b32 v{13+2*d}, 0xffff0000, v{8+d}")
    for q in range(8):
        A.silu(12 + q, 4 + (q & 1))
    for q in range(4):
        A(f"v_cvt_pk_bf16_f32 v{28+q}, v{12+2*q}, v{13+2*q}")
    A("s_waitcnt vmcnt(0)")
    A.stamp(1)
    m_stage(A, 0, R1, R2, 28, 24, 68)
    A.signal(E_M0)
    A.stamp(2)
    A.wait_cnt(C_KV, 4)
    A.stamp(3)
    A(f"s_lshl_b32 s{T4}, s69, 11")
    A(f"s_add_u32 s{T4}, s{T4}, {3*2048}")
    A(f"s_add_u32 s{T4}, s{T4}, s67")
    A(f"s_mul_i32 s{T3}, s69, {3*2048}")
    A(f"s_add_u32 s{T3}, s{T3}, {2*2048}")
    A(f"s_add_u32 s{T3}, s{T3}, s67")
    A("s_waitcnt vmcnt(0)")
    out = A.loads(A.tile_loads(D1, 7, T4, 12288, R1) + A.tile_loads(D1, 7, T3, 12288, R2), p.WIN_C)
    A("s_waitcnt vmcnt(8)")
    n = m_stage(A, 2, R1, R1, 28, 24, 68)
    wo_prep(A)
    A(f"s_waitcnt vmcnt(0)")
    A.loads(wo_loads(A), None)
    m_stage(A, 1, R2, R2, 28, 24, 68)
    A.signal(E_M1)
    A("s_branch L_Cwo")
    A.label("L_C23")
    A(f"s_cmp_eq_u32 s{SW}, 2")
    A("s_cbranch_scc1 L_C2")
    A(f"v_lshlrev_b32 v4, 2, v{VL}")
    A("v_mov_b32 v5, 0")
    A(f"ds_write_b32 v4, v5 offset:{L_CNT}")
    if p.prefetch:
        A("s_getpc_b64 s[44:45]")
        A.raw("L_pcbase:")
        A("s_mov_b32 s46, L_end-L_pcbase")
        A("s_mov_b32 s47, 0x20000")
        A(f"v_lshlrev_b32 v4, 4, v{VL}")
        A(f"s_and_b32 s{T0}, s{SI}, 3")
        A(f"s_lshl_b32 s{T0}, s{T0}, 10")
        for k in range(12):
            A(f"s_add_u32 s{T1}, s{T0}, {4096*k}")
            A(f"buffer_load_dwordx4 v[8:11], v4, s[44:47], s{T1} offen")
    A.init_sync()
    A("s_branch L_C23b")
    A.label("L_C2")
    A.srd(D3, S_X, 16384)
    A.red_lane(20, 21, 4)
    A(f"v_lshlrev_b32 v22, 11, v20")
    A(f"v_lshl_add_u32 v22, v21, 1, v22")
    A(f"s_lshl_b32 s{T0}, s{SJ}, 8")
    A(f"s_lshl_b32 s{T1}, s{SI}, 3")
    A(f"s_add_u32 s{T0}, s{T0}, s{T1}")
    A(f"buffer_load_ushort v23, v22, s[{D3}:{D3+3}], s{T0} offen")
    A.init_sync()
    A.wait_cnt(C_ST, 4)
    A(f"v_lshlrev_b32 v4, 3, v20")
    A(f"ds_read_b64 v[24:25], v4 offset:{L_STAT}")
    A("s_waitcnt vmcnt(0) lgkmcnt(0)")
    A("v_lshlrev_b32 v23, 16, v23")
    A("v_sub_f32 v23, v23, v24")
    A.rnd(23)
    A("v_mul_f32 v23, v23, v25")
    A.rnd(23)
    A(f"v_lshlrev_b32 v22, 12, v20")
    A(f"s_lshl_b32 s{T4}, s{T0}, 1")
    A(f"s_add_u32 s{T4}, s{T4}, {WS_H}")
    A(f"s_lshl_b32 s{T3}, s{SJ}, 17")
    A(f"s_lshl_b32 s{T1}, s{SI}, 12")
    A(f"s_add_u32 s{T3}, s{T3}, s{T1}")
    A(f"s_add_u32 s{T3}, s{T3}, {WS_MP}")
    A.wait_cnt(E_M0, 2)
    A.stamp(1)
    reduce_gather(A, T3, 4, dst=R0)
    A.stamp(2)
    for q in range(4):
        A(f"v_add_f32 v{R0+q}, v{R0+q}, v{R0+4+q}")
        A(f"v_add_f32 v{R0+8+q}, v{R0+8+q}, v{R0+12+q}")
    A.packed_red2(R0, R0 + 8)
    A.rnd2(R0, R0 + 2, 4)
    A(f"v_add_f32 v{R0+2}, 1.0, v{R0+2}")
    A.rnd(R0 + 2)
    A(f"v_mul_f32 v23, v23, v{R0+2}")
    A.rnd(23)
    A(f"v_add_f32 v23, v23, v{R0}")
    A.rnd_tag(23)
    A.quad_gather(23, 8)
    set_exec64(A, EX_V)
    A.pub(8, 22, T4)
    A("s_mov_b64 exec, -1")
    A.signal(E_H)
    A.stamp(3)
    A.label("L_C23b")
    A.wait_cnt(C_KV, 4)
    wo_prep(A)
    A("s_waitcnt vmcnt(0)")
    A.loads(wo_loads(A), None)
    A.label("L_Cwo")
    A("s_waitcnt vmcnt(0)")
    A.signal(C_C)
    A.stamp(4)
    A.perm(R1, R0)
    A(f"v_and_b32 v6, 7, v{VC}")
    A("v_lshlrev_b32 v6, 14, v6")
    A(f"v_lshl_add_u32 v6, v{VG}, 5, v6")
    A(f"s_lshl_b32 s{T3}, s{SI}, 9")
    A(f"s_lshl_b32 s{T0}, s{SW}, 7")
    A(f"s_add_u32 s{T3}, s{T3}, s{T0}")
    A(f"s_add_u32 s{T3}, s{T3}, {WS_O}")
    A.wait_cnt(E_AT, 4)
    t128_stage(A, None, None, C_WO, L_CRED, WS_XP, SI, 5)
    A.signal(E_WO)
    A(f"s_cmp_lt_u32 s{SI}, 4")
    A("s_cbranch_scc1 L_fin")
    A.srd(D1, S_WD, 7340032)
    A(f"s_sub_u32 s67, s{SI}, 4")
    A(f"v_lshlrev_b32 v7, 14, v{VG}")
    A(f"v_lshl_add_u32 v7, v{VC}, 4, v7")
    A(f"s_lshl_b32 s{T0}, s67, 2")
    A(f"s_add_u32 s{T0}, s{T0}, s{SW}")
    A(f"s_lshl_b32 s{T4}, s{T0}, 16")
    A(f"s_lshl_b32 s{T1}, s{SJ}, 8")
    A(f"s_add_u32 s{T4}, s{T4}, s{T1}")
    A.loads(A.tile_loads(D1, 7, T4, 2048, R2), None)
    A(f"v_and_b32 v6, 7, v{VC}")
    A("v_lshlrev_b32 v6, 14, v6")
    A(f"v_lshl_add_u32 v6, v{VG}, 5, v6")
    A(f"s_lshl_b32 s{T3}, s{T0}, 7")
    A(f"s_add_u32 s{T3}, s{T3}, {WS_ACT}")
    A("s_waitcnt vmcnt(0)")
    A.stamp(7)
    A.perm(R2, R0)
    A.wait_cnt(E_X1, 1)
    t128_stage(A, None, None, C_WD, L_CRED2, WS_YP, 67, 8)
    A.signal(E_WD)
    A("s_branch L_fin")


def wo_prep(A):
    A.srd(D2, S_WO, 8388608)
    A(f"s_lshr_b32 s{T0}, s{SI}, 2")
    A(f"s_lshl_b32 s{T0}, s{T0}, 9")
    A(f"s_and_b32 s{T1}, s{SI}, 3")
    A(f"s_lshl_b32 s{T1}, s{T1}, 5")
    A(f"s_add_u32 s{T0}, s{T0}, s{T1}")
    A(f"s_lshl_b32 s{T1}, s{SW}, 3")
    A(f"s_add_u32 s{T0}, s{T0}, s{T1}")
    A(f"s_lshl_b32 s{T2}, s{T0}, 11")
    A(f"s_lshl_b32 s{T1}, s{SJ}, 8")
    A(f"s_add_u32 s{T2}, s{T2}, s{T1}")
    A(f"v_lshlrev_b32 v25, 12, v{VG}")
    A(f"v_lshl_add_u32 v25, v{VC}, 4, v25")


def wo_loads(A):
    rows = [(r & 3) * 128 + (r >> 2) for r in range(8)]
    return A.tile_loads(D2, 25, T2, 2048, R1, rows=rows)


def ln_stats_x(A):
    U = R1
    for d in range(16):
        A(f"v_lshlrev_b32 v{U+2*d}, 16, v{8+d}")
        A(f"v_and_b32 v{U+2*d+1}, 0xffff0000, v{8+d}")
    A(f"v_add_f32 v4, v{U}, v{U+1}")
    A(f"v_add_f32 v5, v{U+2}, v{U+3}")
    for k in range(4, 32, 2):
        A(f"v_add_f32 v4, v4, v{U+k}")
        A(f"v_add_f32 v5, v5, v{U+k+1}")
    A("v_add_f32 v4, v4, v5")
    A.bfly(4, 5, "v_add_f32", bits=(0, 1, 2, 3, 4))
    A("v_mul_f32 v4, 0x3a800000, v4")
    A("v_mov_b32 v6, 0")
    A("v_mov_b32 v7, 0")
    for k in range(0, 32, 2):
        A(f"v_sub_f32 v{U+k}, v{U+k}, v4")
        A(f"v_sub_f32 v{U+k+1}, v{U+k+1}, v4")
        A(f"v_fmac_f32 v6, v{U+k}, v{U+k}")
        A(f"v_fmac_f32 v7, v{U+k+1}, v{U+k+1}")
    A("v_add_f32 v6, v6, v7")
    A.bfly(6, 5, "v_add_f32", bits=(0, 1, 2, 3, 4))
    A("v_mul_f32 v5, 0x3a800000, v6")
    ln_finish(A, 4, 5, 6)
    A(f"s_sub_u32 s{T0}, s{SW}, 4")
    A(f"s_lshl_b32 s{T0}, s{T0}, 4")
    A(f"v_lshrrev_b32 v6, 5, v{VL}")
    A("v_lshlrev_b32 v6, 3, v6")
    A(f"v_add_u32 v6, s{T0}, v6")
    A("s_mov_b32 exec_lo, 1")
    A("s_mov_b32 exec_hi, 1")
    A(f"ds_write_b64 v6, v[4:5] offset:{L_STAT}")
    A("s_mov_b64 exec, -1")
    A.signal(C_ST)


def role_A(A):
    p = A.p
    A.label("L_A")
    A.srd(D1, S_X, 16384)
    A.srd(D2, S_K, 33554432)
    A.srd(D3, S_V, 33554432)
    A(f"s_sub_u32 s{T0}, s{SW}, 4")
    A(f"s_lshl_b32 s{T1}, s{T0}, 12")
    A(f"v_lshlrev_b32 v4, 6, v{VL}")
    for k in range(4):
        A(f"buffer_load_dwordx4 v[{8+4*k}:{11+4*k}], v4, s[{D1}:{D1+3}], s{T1} offen offset:{16*k}")
    A(f"s_lshl_b32 s67, s{SJ}, 2")
    A(f"s_lshr_b32 s{T1}, s{SI}, 3")
    A(f"s_add_u32 s67, s67, s{T1}")
    A(f"s_lshl_b32 s67, s67, 12")
    A(f"s_and_b32 s{T1}, s{SI}, 7")
    A(f"s_lshl_b32 s{T1}, s{T1}, 7")
    A(f"s_add_u32 s67, s67, s{T1}")
    A(f"s_lshl_b32 s{T1}, s{T0}, 5")
    A(f"s_add_u32 s67, s67, s{T1}")
    A(f"s_add_u32 s67, s67, 3072")
    A(f"s_lshl_b32 s67, s67, 8")
    A(f"s_add_u32 s68, s67, 4096")
    A(f"v_lshlrev_b32 v24, 8, v{VC}")
    A(f"v_lshl_add_u32 v24, v{VG}, 4, v24")
    A(f"v_lshlrev_b32 v25, 10, v{VG}")
    A(f"v_lshl_add_u32 v25, v{VC}, 4, v25")
    kv = []
    for kb in range(2):
        for u in range(4):
            kv.append(f"buffer_load_dwordx4 v[{R0+16*kb+4*u}:{R0+16*kb+4*u+3}], v24, s[{D2}:{D2+3}], s{67+kb} offen offset:{64*u} nt")
    kv += A.tile_loads(D3, 25, 67, 256, R2, rows=[0, 1, 2, 3, 16, 17, 18, 19])
    A(f"s_cmp_lt_u32 s{SI}, 8")
    A("s_cbranch_scc1 L_A_s2")
    W = p.WIN_A
    A.loads(kv[:W], None)
    A.init_sync()
    A(f"s_waitcnt vmcnt({W})")
    ln_stats_x(A)
    A.loads(kv[W:], W, already=W)
    A("s_branch L_A_kv")
    A.label("L_A_s2")
    A.init_sync()
    A("s_waitcnt vmcnt(0)")
    ln_stats_x(A)
    A.wait_cnt(C_WQ, 8)
    A.loads(kv, W)
    A.label("L_A_kv")
    A(f"s_waitcnt vmcnt({p.TRIG_A})")
    A.signal(C_KV)
    A("s_waitcnt vmcnt(0)")
    A.stamp(1)
    A.perm(R2, R1)
    A(f"v_and_b32 v6, 7, v{VC}")
    A("v_lshlrev_b32 v6, 9, v6")
    A(f"v_lshl_add_u32 v6, v{VG}, 5, v6")
    A(f"s_lshl_b32 s{T3}, s{SJ}, 14")
    A(f"s_lshr_b32 s{T1}, s{SI}, 3")
    A(f"s_lshl_b32 s{T1}, s{T1}, 12")
    A(f"s_add_u32 s{T3}, s{T3}, s{T1}")
    A(f"s_add_u32 s{T3}, s{T3}, {WS_Q}")
    A(f"s_sub_u32 s{T0}, s{SW}, 4")
    A(f"s_lshl_b32 s{T1}, s{T0}, 7")
    A(f"s_add_u32 s{T3}, s{T3}, s{T1}")
    A(f"v_lshlrev_b32 v7, 4, v{VL}")
    A(f"s_lshl_b32 s{T1}, s{T0}, 10")
    A(f"v_add_u32 v24, s{T1}, v7")
    A.wait_cnt(E_H, 1)
    A.poll([(R2, 6, 0, None), (R2 + 4, 6, 16, None)], T3)
    A.stamp(2)
    A.pack8(R2, R2)
    A(f"ds_write_b128 v24, v[{R2}:{R2+3}] offset:{L_QF}")
    A.signal(E_Q)
    A.wait_cnt(E_Q, 4)
    for u in range(4):
        A(f"ds_read_b128 v[{8+4*u}:{11+4*u}], v7 offset:{L_QF+1024*u}")
    A("s_waitcnt lgkmcnt(0)")
    S = 24
    for kb in range(2):
        for u in range(4):
            c = "0" if u == 0 else f"v[{S+4*kb}:{S+4*kb+3}]"
            A(f"v_mfma_f32_16x16x32_bf16 v[{S+4*kb}:{S+4*kb+3}], v[{R0+16*kb+4*u}:{R0+16*kb+4*u+3}], v[{8+4*u}:{11+4*u}], {c}")
    for k in range(S, S + 8, 2):
        A.rnd2(k, k + 1, 4)
        A(f"v_mul_f32 v{k}, 0x3db504f3, v{k}")
        A(f"v_mul_f32 v{k+1}, 0x3db504f3, v{k+1}")
        A.rnd2(k, k + 1, 5)
    A(f"v_max3_f32 v6, v{S}, v{S+1}, v{S+2}")
    A(f"v_max3_f32 v7, v{S+3}, v{S+4}, v{S+5}")
    A(f"v_max3_f32 v6, v6, v{S+6}, v{S+7}")
    A("v_max_f32 v6, v6, v7")
    A.bfly(6, 5, "v_max_f32", bits=(4, 5))
    for k in range(S, S + 8):
        A(f"v_sub_f32 v{k}, v{k}, v6")
        A(f"v_mul_f32 v{k}, {LOG2E:#x}, v{k}")
        A(f"v_exp_f32 v{k}, v{k}")
    for q in range(4):
        A(f"v_cvt_pk_bf16_f32 v{8+q}, v{S+2*q}, v{S+2*q+1}")
    A.mfma(R2, 8, R1, True)
    A(f"v_add_f32 v7, v{S}, v{S+1}")
    for k in range(S + 2, S + 8):
        A(f"v_add_f32 v7, v7, v{k}")
    A.bfly(7, 5, "v_add_f32", bits=(4, 5))
    A(f"s_sub_u32 s{T0}, s{SW}, 4")
    A(f"s_lshl_b32 s{T1}, s{T0}, 6")
    A(f"v_lshlrev_b32 v4, 2, v{VC}")
    A(f"v_add_u32 v4, s{T1}, v4")
    A("s_mov_b64 exec, 0xff")
    A(f"ds_write_b32 v4, v6 offset:{L_AST}")
    A(f"ds_write_b32 v4, v7 offset:{L_AST+32}")
    A("s_mov_b32 exec_lo, -1\ns_mov_b32 exec_hi, 0")
    A(f"v_lshlrev_b32 v4, 8, v{VC}")
    A(f"v_lshl_add_u32 v4, v{VG}, 4, v4")
    A(f"s_lshl_b32 s{T1}, s{T0}, 12")
    A(f"v_add_u32 v4, s{T1}, v4")
    for t in range(8):
        A(f"ds_write_b128 v4, v[{R2+4*t}:{R2+4*t+3}] offset:{L_ARED+32*t}")
    A("s_mov_b64 exec, -1")
    A.signal(C_A)
    A(f"v_and_b32 v6, 31, v{VL}")
    A(f"v_lshrrev_b32 v7, 5, v{VL}")
    A(f"v_lshlrev_b32 v20, 5, v6")
    A(f"v_lshl_add_u32 v20, v7, 4, v20")
    A(f"s_lshl_b32 s{T1}, s{T0}, 10")
    A(f"v_add_u32 v20, s{T1}, v20")
    A(f"v_lshlrev_b32 v21, 4, v7")
    A(f"v_lshlrev_b32 v22, 14, v7")
    A(f"v_and_b32 v5, 3, v6")
    A(f"v_lshl_add_u32 v22, v5, 10, v22")
    A(f"v_lshrrev_b32 v5, 2, v6")
    A(f"v_lshl_add_u32 v22, v5, 4, v22")
    A(f"s_lshl_b32 s{T3}, s{SJ}, 5")
    A(f"s_and_b32 s{T1}, s{SI}, 24")
    A(f"s_add_u32 s{T3}, s{T3}, s{T1}")
    A(f"s_add_u32 s{T3}, s{T3}, s{T0}")
    A(f"s_lshl_b32 s{T3}, s{T3}, 12")
    A(f"s_and_b32 s{T1}, s{SI}, 7")
    A(f"s_lshl_b32 s{T2}, s{T1}, 7")
    A(f"s_add_u32 s{T3}, s{T3}, s{T2}")
    A(f"s_add_u32 s{T3}, s{T3}, {WS_OPD}")
    A(f"s_lshl_b32 s{T4}, s{SJ}, 2")
    A(f"s_lshr_b32 s{T2}, s{SI}, 3")
    A(f"s_add_u32 s{T4}, s{T4}, s{T2}")
    A(f"s_lshl_b32 s{T4}, s{T4}, 9")
    A(f"s_lshl_b32 s{T2}, s{T1}, 5")
    A(f"s_add_u32 s{T4}, s{T4}, s{T2}")
    A(f"s_add_u32 s{T4}, s{T4}, {WS_OPM}")
    A(f"v_lshlrev_b32 v23, 8, v7")
    A.wait_cnt(C_A, 4)
    M, L, O = R0, R0 + 16, R1
    for w in range(4):
        A(f"ds_read_b128 v[{M+4*w}:{M+4*w+3}], v21 offset:{L_AST+64*w}")
    for w in range(4):
        A(f"ds_read_b128 v[{O+4*w}:{O+4*w+3}], v20 offset:{L_ARED+4096*w}")
    for w in range(4):
        A(f"ds_read_b128 v[{L+4*w}:{L+4*w+3}], v21 offset:{L_AST+64*w+32}")
    A("s_waitcnt lgkmcnt(8)")
    for q in range(4):
        A(f"v_max3_f32 v{8+q}, v{M+q}, v{M+4+q}, v{M+8+q}")
        A(f"v_max_f32 v{8+q}, v{8+q}, v{M+12+q}")
    for w in range(4):
        for q in range(4):
            A(f"v_sub_f32 v{M+4*w+q}, v{M+4*w+q}, v{8+q}")
            A(f"v_mul_f32 v{M+4*w+q}, {LOG2E:#x}, v{M+4*w+q}")
            A(f"v_exp_f32 v{M+4*w+q}, v{M+4*w+q}")
    A("s_waitcnt lgkmcnt(4)")
    for q in range(4):
        A(f"v_mul_f32 v{16+q}, v{O+q}, v{M+q}")
        for w in range(1, 4):
            A(f"v_fmac_f32 v{16+q}, v{O+4*w+q}, v{M+4*w+q}")
    A.tagf(range(16, 20))
    A.pub(16, 22, T3, 0, local=True)
    A("s_waitcnt lgkmcnt(0)")
    for q in range(4):
        A(f"v_mul_f32 v{12+q}, v{L+q}, v{M+q}")
        for w in range(1, 4):
            A(f"v_fmac_f32 v{12+q}, v{L+4*w+q}, v{M+4*w+q}")
    A.tagf(range(8, 16))
    A(f"s_cmp_lg_u32 s{SW}, 4")
    A("s_cbranch_scc1 L_A_nostat")
    A("s_mov_b32 exec_lo, 1")
    A("s_mov_b32 exec_hi, 1")
    A.pub(8, 23, T4, 0, local=True)
    A.pub(12, 23, T4, 16, local=True)
    A.pub_g(8, 23, T4, 0)
    A.pub_g(12, 23, T4, 16)
    A("s_mov_b64 exec, -1")
    A.label("L_A_nostat")
    A.pub_g(16, 22, T3, 0)
    A.signal(E_AT)
    A.stamp(3)
    A(f"s_cmp_eq_u32 s{SW}, 5")
    A("s_cbranch_scc1 L_A1")
    A(f"s_cmp_eq_u32 s{SW}, 6")
    A("s_cbranch_scc1 L_A2")
    A(f"s_cmp_eq_u32 s{SW}, 7")
    A("s_cbranch_scc1 L_fin")
    A(f"v_lshlrev_b32 v6, 4, v{VL}")
    A(f"v_lshrrev_b32 v7, 3, v{VL}")
    A("v_lshlrev_b32 v7, 5, v7")
    A(f"s_lshl_b32 s{T3}, s{SJ}, 5")
    A(f"s_add_u32 s{T3}, s{T3}, s{SI}")
    A(f"s_lshl_b32 s{T4}, s{T3}, 9")
    A(f"s_add_u32 s{T4}, s{T4}, {WS_O}")
    A(f"s_lshr_b32 s{T2}, s{T3}, 2")
    A(f"s_lshl_b32 s{T2}, s{T2}, 8")
    A(f"s_lshl_b32 s{T3}, s{T3}, 12")
    A(f"s_sub_u32 s{T2}, s{T2}, s{T3}")
    A(f"s_add_u32 s{T2}, s{T2}, {WS_OPM - WS_OPD}")
    A(f"s_add_u32 s{T3}, s{T3}, {WS_OPD}")
    A(f"v_add_u32 v7, s{T2}, v7")
    A(f"v_and_b32 v20, 7, v{VL}")
    A(f"v_lshl_add_u32 v20, v20, 2, v{VG}")
    A("v_lshlrev_b32 v20, 4, v20")
    Dd = R0
    A.poll([(8, 7, 0, None), (12, 7, 16, None)] + [(Dd + 4 * u, 6, 1024 * u, None) for u in range(4)], T3, local=True)
    A.stamp(4)
    for q in range(4):
        A(f"v_mov_b32 v{16+q}, v{8+q}")
    for q in range(4):
        A.bfly(16 + q, 24 + q, "v_max_f32")
    for q in range(4):
        A(f"v_sub_f32 v{8+q}, v{8+q}, v{16+q}")
        A(f"v_mul_f32 v{8+q}, {LOG2E:#x}, v{8+q}")
        A(f"v_exp_f32 v{8+q}, v{8+q}")
    for q in range(4):
        A(f"v_mul_f32 v{12+q}, v{12+q}, v{8+q}")
    for u in range(4):
        for q in range(4):
            A(f"v_mul_f32 v{Dd+4*u+q}, v{Dd+4*u+q}, v{8+q}")
    for q in range(4):
        A.bfly(12 + q, 24 + q, "v_add_f32")
    for k in range(16):
        A(f"v_add_f32_dpp v{Dd+k}, v{Dd+k}, v{Dd+k} row_ror:8 row_mask:0xf bank_mask:0xf")
    for q in range(4):
        A(f"v_permlane32_swap_b32 v{Dd+q}, v{Dd+8+q}")
        A(f"v_permlane32_swap_b32 v{Dd+4+q}, v{Dd+12+q}")
    for q in range(4):
        A(f"v_add_f32 v{Dd+q}, v{Dd+q}, v{Dd+8+q}")
        A(f"v_add_f32 v{Dd+4+q}, v{Dd+4+q}, v{Dd+12+q}")
    for q in range(4):
        A(f"v_permlane16_swap_b32 v{Dd+q}, v{Dd+4+q}")
    for q in range(4):
        A(f"v_rcp_f32 v{12+q}, v{12+q}")
        A(f"v_add_f32 v{Dd+q}, v{Dd+q}, v{Dd+4+q}")
    for q in range(4):
        A(f"v_mul_f32 v{Dd+q}, v{Dd+q}, v{12+q}")
        A.rnd_tag(Dd + q)
    A("s_mov_b32 exec_lo, 0x00ff00ff")
    A("s_mov_b32 exec_hi, 0x00ff00ff")
    A.pub(Dd, 20, T4)
    A("s_mov_b64 exec, -1")
    A.stamp(5)
    A("s_branch L_fin")
    A.label("L_A2")
    A.red_lane(20, 21, 4)
    A(f"v_lshlrev_b32 v22, 12, v20")
    A(f"s_lshl_b32 s{T4}, s{SJ}, 9")
    A(f"s_lshl_b32 s{T1}, s{SI}, 4")
    A(f"s_add_u32 s{T4}, s{T4}, s{T1}")
    A(f"s_add_u32 s{T4}, s{T4}, {WS_SB}")
    A(f"s_lshl_b32 s{T3}, s{SJ}, 17")
    A(f"s_lshl_b32 s{T1}, s{SI}, 12")
    A(f"s_add_u32 s{T3}, s{T3}, s{T1}")
    A(f"s_add_u32 s{T3}, s{T3}, {WS_MP + 2*8*131072}")
    A.wait_cnt(E_M1, 2)
    reduce_gather(A, T3, 4, dst=R0)
    for q in range(4):
        A(f"v_add_f32 v{R0+q}, v{R0+q}, v{R0+4+q}")
        A(f"v_add_f32 v{R0+8+q}, v{R0+8+q}, v{R0+12+q}")
    A.packed_red2(R0, R0 + 8)
    A.rnd(R0 + 2)
    A(f"v_add_f32 v{R0+2}, 1.0, v{R0+2}")
    A.rnd_tag(R0)
    A.rnd_tag(R0 + 2)
    A.quad_gather(R0, 8)
    A.quad_gather(R0 + 2, 12)
    A(f"s_add_u32 s{T3}, s{T4}, {WS_CB - WS_SB}")
    set_exec64(A, EX_V)
    A.pub(8, 22, T4)
    A.pub(12, 22, T3)
    A("s_mov_b64 exec, -1")
    A.signal(E_S)
    A.stamp(4)
    A("s_branch L_fin")
    A.label("L_A1")
    A.red_lane(20, 21, 4)
    A(f"v_lshlrev_b32 v22, 11, v20")
    A(f"v_lshl_add_u32 v22, v21, 1, v22")
    A(f"s_lshl_b32 s67, s{SJ}, 8")
    A(f"s_lshl_b32 s{T1}, s{SI}, 3")
    A(f"s_add_u32 s67, s67, s{T1}")
    A(f"buffer_load_ushort v23, v22, s[{D1}:{D1+3}], s67 offen")
    A(f"s_lshl_b32 s68, s{SJ}, 17")
    A(f"s_lshl_b32 s{T1}, s{SI}, 12")
    A(f"s_add_u32 s68, s68, s{T1}")
    A(f"s_add_u32 s{T3}, s68, {WS_MP + 1*8*131072}")
    A.wait_cnt(E_M1, 2)
    reduce_gather(A, T3, 4, dst=R0)
    for q in range(4):
        A(f"v_add_f32 v{R0+q}, v{R0+q}, v{R0+4+q}")
        A(f"v_add_f32 v{R0+8+q}, v{R0+8+q}, v{R0+12+q}")
    A.packed_red2(R0, R0 + 8)
    A.rnd2(R0, R0 + 2, 4)
    A(f"v_mov_b32 v24, v{R0}")
    A(f"v_mov_b32 v25, v{R0+2}")
    A("v_lshlrev_b32 v23, 16, v23")
    A(f"v_lshlrev_b32 v26, 12, v20")
    A(f"s_lshl_b32 s{T4}, s67, 1")
    A(f"s_add_u32 s{T4}, s{T4}, {WS_X1}")
    A(f"s_add_u32 s{T3}, s68, {WS_XP}")
    A.wait_cnt(E_WO, 4)
    A.stamp(4)
    reduce_gather(A, T3, 4, dst=R0)
    A.stamp(5)
    for q in range(4):
        A(f"v_add_f32 v{R0+q}, v{R0+q}, v{R0+4+q}")
        A(f"v_add_f32 v{R0+8+q}, v{R0+8+q}, v{R0+12+q}")
    for q in range(4):
        A(f"v_add_f32 v{R0+q}, v{R0+q}, v{R0+8+q}")
    A.packed_red1(R0)
    A.rnd(R0)
    A(f"v_mul_f32 v{R0}, v{R0}, v24")
    A.rnd(R0)
    A(f"v_add_f32 v23, v23, v{R0}")
    A.rnd_tag(23)
    A.quad_gather(23, 8)
    set_exec64(A, EX_V)
    A.pub(8, 26, T4)
    A("s_mov_b64 exec, -1")
    A.signal(E_X1)
    A.stamp(6)
    A("v_and_b32 v23, 0xffff0000, v23")
    A.srd(D2, S_OUT, 16384)
    A(f"s_add_u32 s{T3}, s68, {WS_YP}")
    A(f"s_cmp_lt_u32 s{SI}, 4")
    A("s_cbranch_scc1 L_A1f")
    A.wait_cnt(E_WD, 4)
    A.label("L_A1f")
    reduce_gather(A, T3, 4, dst=R0, last_half=True)
    A.stamp(7)
    for q in range(4):
        A(f"v_add_f32 v{R0+q}, v{R0+q}, v{R0+4+q}")
        A(f"v_add_f32 v{R0+8+q}, v{R0+8+q}, v{R0+12+q}")
    for q in range(4):
        A(f"v_add_f32 v{R0+q}, v{R0+q}, v{R0+8+q}")
    A.packed_red1(R0)
    A.rnd(R0)
    A(f"v_mul_f32 v{R0}, v{R0}, v25")
    A.rnd(R0)
    A(f"v_add_f32 v23, v23, v{R0}")
    A("v_cvt_pk_bf16_f32 v23, v23, v23")
    A("s_mov_b32 exec_lo, 0x00ff00ff")
    A("s_mov_b32 exec_hi, 0x00ff00ff")
    A(f"buffer_store_short v23, v22, s[{D2}:{D2+3}], s67 offen")
    A("s_mov_b64 exec, -1")
    A.stamp(8)
    A("s_cmp_lg_u32 s2, 0")
    A("s_cbranch_scc1 L_fin")
    A(f"s_add_u32 s{T0}, s{SEP}, 1")
    A(f"v_mov_b32 v4, s{T0}")
    A("v_mov_b32 v5, 0")
    A("s_mov_b64 exec, 1")
    A(f"buffer_store_dword v4, v5, s[{WS}:{WS+3}], 0 offen sc1")
    A("s_mov_b64 exec, -1")
    A("s_branch L_fin")


def g_reduce_write(A, cnt):
    A(f"v_and_b32 v6, 7, v{VC}")
    A("v_lshlrev_b32 v6, 5, v6")
    A(f"v_lshrrev_b32 v5, 3, v{VC}")
    A("v_lshl_add_u32 v6, v5, 3, v6")
    A(f"v_lshrrev_b32 v5, 1, v{VG}")
    A("v_lshl_add_u32 v6, v5, 4, v6")
    A(f"v_and_b32 v5, 1, v{VG}")
    A("v_lshl_add_u32 v6, v5, 10, v6")
    A(f"s_sub_u32 s{T0}, s{SW}, 8")
    A(f"s_lshl_b32 s{T1}, s{T0}, 11")
    A(f"v_add_u32 v6, s{T1}, v6")


def g_reduce_do(A, cnt):
    for t in range(2):
        for r in range(4):
            A(f"ds_write_b32 v6, v{R2+4*t+r} offset:{L_RED + 256*r + 4*t}")
    A.signal(cnt)
    A.wait_cnt(cnt, 8)


def role_G(A):
    p = A.p
    A.label("L_G")
    A(f"s_sub_u32 s67, s{SW}, 8")
    A(f"s_cmp_ge_u32 s{SI}, 8")
    A("s_cbranch_scc1 L_G_gu")
    A.srd(D1, S_WQ, 8388608)
    A.d64_voff(7, 8192, 5)
    A(f"s_lshl_b32 s68, s{SI}, 3")
    A(f"s_add_u32 s68, s68, s{SJ}")
    A(f"s_lshl_b32 s{T3}, s67, 20")
    A(f"s_lshl_b32 s{T1}, s68, 7")
    A(f"s_add_u32 s{T3}, s{T3}, s{T1}")
    A(f"s_add_u32 s{T4}, s{T3}, {64*8192}")
    ld = A.tile_loads(D1, 7, T3, 8192, R1) + A.tile_loads(D1, 7, T4, 8192, R2)
    W = p.WIN_G
    A.loads(ld[:W], None)
    A.init_sync()
    A.loads(ld[W:], W, already=W)
    A(f"s_waitcnt vmcnt({p.TRIG_G})")
    A.signal(C_WQ)
    A.afrag_voff(26, 4096, 4, 5)
    g_reduce_write(A, C_G)
    A(f"s_lshl_b32 s{T3}, s67, 9")
    A(f"s_add_u32 s{T3}, s{T3}, {WS_H}")
    A("s_waitcnt vmcnt(0)")
    A.stamp(1)
    A.perm(R1, R0)
    A.perm(R2, R1)
    A.wait_cnt(E_H, 1)
    A.poll([(8, 26, 0, None), (12, 26, 16, None), (16, 26, 256, None), (20, 26, 272, None)], T3)
    A.stamp(2)
    A.pack8(8, 8)
    A.pack8(16, 12)
    A.mfma(R2, 8, R0, True)
    A.mfma(R2, 12, R1, False)
    A.diag_add(R2)
    g_reduce_do(A, C_G)
    A(f"v_lshlrev_b32 v6, 4, v{VC}")
    A(f"s_lshl_b32 s{T1}, s67, 8")
    A(f"v_add_u32 v7, s{T1}, v6")
    for w in range(8):
        A(f"ds_read_b128 v[{R0+4*w}:{R0+4*w+3}], v7 offset:{L_RED+2048*w}")
    A(f"s_lshl_b32 s{T4}, s67, 14")
    A(f"s_lshl_b32 s{T1}, s68, 8")
    A(f"s_add_u32 s{T4}, s{T4}, s{T1}")
    A(f"s_add_u32 s{T4}, s{T4}, {WS_Q}")
    A("s_waitcnt lgkmcnt(0)")
    sum8(A, R0)
    for q in range(4):
        A.rnd_tag(R0 + q)
    A("s_mov_b64 exec, 0xffff")
    A.pub(R0, 6, T4)
    A("s_mov_b64 exec, -1")
    A.stamp(3)
    A("s_branch L_fin")
    A.label("L_G_gu")
    A.init_sync()
    A(f"s_cmp_ge_u32 s{SI}, 22")
    A("s_cbranch_scc1 L_fin")
    A.srd(D1, S_WG, 7340032)
    A.srd(D2, S_WU, 7340032)
    A(f"v_lshrrev_b32 v5, 3, v{VC}")
    A(f"v_lshl_add_u32 v5, v5, 2, v{VG}")
    A(f"s_mov_b32 s{T6}, {8*7168}")
    A(f"v_mul_lo_u32 v5, v5, s{T6}")
    A(f"v_and_b32 v7, 3, v{VC}")
    A("v_lshl_add_u32 v7, v7, 4, v5")
    A(f"s_sub_u32 s68, s{SI}, 8")
    A(f"s_lshl_b32 s68, s68, 3")
    A(f"s_add_u32 s68, s68, s{SJ}")
    A(f"s_mul_i32 s{T3}, s67, {128*7168}")
    A(f"s_lshl_b32 s{T1}, s68, 6")
    A(f"s_add_u32 s{T3}, s{T3}, s{T1}")
    ld = []
    for t in range(2):
        for r in range(8):
            dst = (R1, R2)[t] + 4 * r
            off = (64 * t + r) * 7168
            ld.append((f"s_add_u32 s{T6}, s{T3}, {off}\n"
                       f"s_mov_b32 exec_lo, 0x0f0f0f0f\ns_mov_b32 exec_hi, 0x0f0f0f0f\n"
                       f"buffer_load_dwordx4 v[{dst}:{dst+3}], v7, s[{D1}:{D1+3}], s{T6} offen nt\n"
                       f"s_mov_b32 exec_lo, 0xf0f0f0f0\ns_mov_b32 exec_hi, 0xf0f0f0f0\n"
                       f"buffer_load_dwordx4 v[{dst}:{dst+3}], v7, s[{D2}:{D2+3}], s{T6} offen nt\n"
                       f"s_mov_b64 exec, -1", 2))
    A.wait_cnt(C_C, 4)
    A.stamp(1)
    A.loads(ld, 2 * p.WIN_G)
    A.afrag_voff(26, 4096, 4, 5)
    A(f"s_lshl_b32 s{T3}, s67, 9")
    A(f"s_add_u32 s{T3}, s{T3}, {WS_SB}")
    A("s_waitcnt vmcnt(0)")
    A.stamp(2)
    A.perm(R1, R0)
    A.perm(R2, R1)
    offs = (0, 16, 256, 272)
    A.wait_cnt(E_S, 1)
    A.poll([(R2 + 4 * k, 26, offs[k], None) for k in range(4)] +
           [(R2 + 16 + 4 * k, 26, offs[k], WS_CB - WS_SB) for k in range(4)], T3)
    A.stamp(3)
    A(f"s_add_u32 s{T3}, s{T3}, {WS_X1 - WS_SB}")
    A(f"v_and_b32 v27, 7, v{VC}")
    A("v_lshlrev_b32 v27, 3, v27")
    A(f"s_lshl_b32 s{T1}, s67, 6")
    A(f"v_add_u32 v25, s{T1}, v27")
    X = 8
    A.wait_cnt(E_X1, 1)
    A.poll([(X + 4 * k, 26, offs[k], None) for k in range(4)], T3)
    A.stamp(4)
    A(f"v_add_f32 v4, v{X}, v{X+1}")
    A(f"v_add_f32 v5, v{X+2}, v{X+3}")
    for k in range(4, 16, 2):
        A(f"v_add_f32 v4, v4, v{X+k}")
        A(f"v_add_f32 v5, v5, v{X+k+1}")
    A("v_add_f32 v4, v4, v5")
    A.bfly(4, 5, "v_add_f32")
    A("v_mul_f32 v4, 0x3c000000, v4")
    A("v_mov_b32 v5, 0")
    A("v_mov_b32 v7, 0")
    for k in range(0, 16, 2):
        A(f"v_sub_f32 v6, v{X+k}, v4")
        A(f"v_sub_f32 v24, v{X+k+1}, v4")
        A("v_fmac_f32 v5, v6, v6")
        A("v_fmac_f32 v7, v24, v24")
    A("v_add_f32 v5, v5, v7")
    A.bfly(5, 6, "v_add_f32")
    A("s_mov_b64 exec, 0xff")
    A(f"ds_write_b64 v25, v[4:5] offset:{L_ST2}")
    A("s_mov_b64 exec, -1")
    A.signal(C_G2, 6, 7)
    A.wait_cnt(C_G2, 8, 6, 7)
    A("v_mov_b32 v4, 0")
    A("v_mov_b32 v5, 0")
    A("v_mov_b32 v6, 0")
    for h in range(4):
        A(f"ds_read_b64 v[28:29], v27 offset:{L_ST2 + 64*(2*h)}")
        A(f"ds_read_b64 v[30:31], v27 offset:{L_ST2 + 64*(2*h+1)}")
        A("s_waitcnt lgkmcnt(0)")
        if h == 0:
            A("v_mov_b32 v7, v28")
        A("v_sub_f32 v28, v28, v7")
        A("v_sub_f32 v30, v30, v7")
        A("v_add_f32 v4, v4, v28")
        A("v_add_f32 v5, v5, v29")
        A("v_fmac_f32 v6, v28, v28")
        A("v_add_f32 v4, v4, v30")
        A("v_add_f32 v5, v5, v31")
        A("v_fmac_f32 v6, v30, v30")
    A("v_mul_f32 v4, 0x3e000000, v4")
    A("v_mul_f32 v24, v4, v4")
    A("v_fma_f32 v6, -v24, 8.0, v6") if False else A("v_mul_f32 v24, 0x41000000, v24")
    A("v_sub_f32 v6, v6, v24")
    A("v_max_f32 v6, 0, v6")
    A("v_mul_f32 v6, 0x43000000, v6")
    A("v_add_f32 v5, v5, v6")
    A("v_mul_f32 v5, 0x3a800000, v5")
    A("v_add_f32 v4, v4, v7")
    ln_finish(A, 4, 5, 6)
    for k in range(0, 16, 2):
        a, b = X + k, X + k + 1
        A(f"v_sub_f32 v{a}, v{a}, v4")
        A(f"v_sub_f32 v{b}, v{b}, v4")
        A.rnd2(a, b, 6)
        A(f"v_mul_f32 v{a}, v{a}, v5")
        A(f"v_mul_f32 v{b}, v{b}, v5")
        A.rnd2(a, b, 7)
        A(f"v_mul_f32 v{a}, v{a}, v{R2+16+k}")
        A(f"v_mul_f32 v{b}, v{b}, v{R2+16+k+1}")
        A.rnd2(a, b, 6)
        A(f"v_add_f32 v{a}, v{a}, v{R2+k}")
        A(f"v_add_f32 v{b}, v{b}, v{R2+k+1}")
        A(f"v_cvt_pk_bf16_f32 v{24+k//2}, v{a}, v{b}")
    A.mfma(R2, 24, R0, True)
    A.mfma(R2, 28, R1, False)
    g_reduce_write(A, C_G)
    A.diag_add(R2)
    g_reduce_do(A, C_G)
    A(f"v_lshlrev_b32 v6, 4, v{VC}")
    A(f"s_lshl_b32 s{T1}, s67, 8")
    A(f"v_add_u32 v7, s{T1}, v6")
    for w in range(8):
        A(f"ds_read_b128 v[{R0+4*w}:{R0+4*w+3}], v7 offset:{L_RED+2048*w}")
    A(f"s_lshl_b32 s{T4}, s67, 14")
    A(f"s_lshl_b32 s{T1}, s68, 7")
    A(f"s_add_u32 s{T4}, s{T4}, s{T1}")
    A(f"s_add_u32 s{T4}, s{T4}, {WS_ACT}")
    A("s_waitcnt lgkmcnt(0)")
    sum8(A, R0)
    for q in range(4):
        A.rnd(R0 + q)
    for q in range(4):
        A(f"v_mov_b32_dpp v{R0+4+q}, v{R0+q} row_ror:8 row_mask:0xf bank_mask:0xf")
    for q in range(4):
        A.silu(R0 + q, R0 + 8 + q)
        A.rnd(R0 + q)
        A(f"v_mul_f32 v{R0+q}, v{R0+q}, v{R0+4+q}")
        A.rnd_tag(R0 + q)
    A("s_mov_b64 exec, 0xff")
    A.pub(R0, 6, T4)
    A("s_mov_b64 exec, -1")
    A.stamp(5)
    A("s_branch L_fin")


def sum8(A, B):
    for q in range(4):
        A(f"v_add_f32 v{B+q}, v{B+q}, v{B+4+q}")
        A(f"v_add_f32 v{B+8+q}, v{B+8+q}, v{B+12+q}")
        A(f"v_add_f32 v{B+16+q}, v{B+16+q}, v{B+20+q}")
        A(f"v_add_f32 v{B+24+q}, v{B+24+q}, v{B+28+q}")
    for q in range(4):
        A(f"v_add_f32 v{B+q}, v{B+q}, v{B+8+q}")
        A(f"v_add_f32 v{B+16+q}, v{B+16+q}, v{B+24+q}")
    for q in range(4):
        A(f"v_add_f32 v{B+q}, v{B+q}, v{B+16+q}")


def build(p):
    A = Gen(p)
    A.raw(f"; @launch grid=(256,1,1) block=(1024,1,1) lds={LDS_BYTES}")
    A.raw('.amdgcn_target "amdgcn-amd-amdhsa--gfx950"')
    kernel_begin(A, KN)
    A.stamp(0)
    A("s_load_dwordx16 s[4:19], s[0:1], 0")
    A("s_load_dwordx8 s[20:27], s[0:1], 64")
    A("s_load_dwordx4 s[28:31], s[0:1], 96")
    A("s_cmp_ge_u32 s2, 256")
    A("s_cbranch_scc1 L_end")
    A("v_lshrrev_b32 v4, 6, v0")
    A("v_and_b32 v0, 63, v0")
    A(f"v_readfirstlane_b32 s{SW}, v4")
    A(f"v_and_b32 v{VC}, 15, v0")
    A(f"v_lshrrev_b32 v{VG}, 4, v0")
    A(f"s_and_b32 s{SJ}, s2, 7")
    A(f"s_lshr_b32 s{SI}, s2, 3")
    A(f"s_mov_b32 s{SFF}, 0xff")
    A(f"s_mov_b32 s{SLO}, 0x05040100")
    A(f"s_mov_b32 s{SHI}, 0x07060302")
    A(f"s_mov_b32 s{SHM}, 0xffff0000")
    A.stamps_init()
    A("s_waitcnt lgkmcnt(0)")
    A(f"s_load_dword s{SEP}, s[{S_WSP}:{S_WSP+1}], 0")
    A.srd(WS, S_WSP, 0x10000000)
    A(f"s_cmp_ge_u32 s{SW}, 8")
    A("s_cbranch_scc1 L_G")
    A(f"s_cmp_ge_u32 s{SW}, 4")
    A("s_cbranch_scc1 L_A")
    role_C(A)
    role_A(A)
    role_G(A)
    A.label("L_fin")
    A.stamps_out()
    A.label("L_end")
    A("s_endpgm")
    kernel_desc(A, KN, 128, 102)
    return A.text()


if __name__ == "__main__":
    p = P()
    open("p1.s", "w").write(build(p))
    p.diag = True
    open("p1d.s", "w").write(build(p))
```

```python
import sys
from asmgen import *

WS_EPOCH = 0
WS_H = 0x010000
WS_X1 = 0x020000
WS_SB = 0x030000
WS_CB = 0x038000
WS_Q = 0x040000
WS_O = 0x060000
WS_ACT = 0x080000
WS_OPD = 0x100000
WS_OPM = 0x200000
WS_MP = 0x300000
WS_XP = 0x600000
WS_YP = 0x700000
GOFF = 0x800000
WS_TS = 0x1000000

L_CNT = 0
C_ST, C_KV, C_WQ, C_C, C_G, C_G2, C_A, C_WO, C_WD, E_M0, E_H, E_AT, E_WO, E_X1, E_WD, E_M1, E_S, E_Q = [4 * k for k in range(18)]
L_STAT = 256
L_ST2 = 512
L_AST = 1024
L_QF = 2048
L_RED = 6144
L_ARED = L_RED + 16384
L_CRED = L_ARED + 16384
L_CRED2 = L_CRED
LDS_BYTES = L_CRED2 + 16384

R0, R1, R2 = 32, 64, 96
LOG2E = 0x3fb8aa3b

S_X, S_K, S_V, S_WQ, S_WO, S_WG, S_WU, S_WD, S_C, S_WM, S_OUT, S_DBG, S_WSP = 4, 6, 8, 10, 12, 16, 18, 20, 22, 24, 26, 28, 30
WS = 32
D1, D2, D3 = 36, 40, 44
SJ, SI, SW, STAG, SFF, SLO, SHI, SHM = 48, 49, 50, 51, 52, 53, 54, 55
T0, T1, T2, T3, T4, T5, T6, T7 = 56, 57, 58, 59, 60, 61, 62, 63
SEP = 64
SCNT = 65
SB_ = 66
SPG = 3
STAMP0 = 70

VL, VC, VG, VTAG = 0, 1, 2, 3


class P:
    WIN_A = 6
    WIN_G = 3
    WIN_C = 8
    TRIG_A = 3
    TRIG_G = 2
    NLOCAL = 200
    LIMIT = 200000
    LLIMIT = 4000000
    diag = False
    local = True
    prefetch = True
    prio = False
    psleep = 0
    lsleep = 0
    dbg = False


class Gen(Asm):
    def __init__(self, p):
        super().__init__()
        self.p = p
        self.nstamp = 0

    def srd(self, d, ptr, size):
        self(f"s_mov_b32 s{d}, s{ptr}")
        self(f"s_mov_b32 s{d+1}, s{ptr+1}")
        self(f"s_mov_b32 s{d+2}, {size}")
        self(f"s_mov_b32 s{d+3}, 0x20000")

    def stamp(self, k):
        if self.p.diag:
            self(f"s_memrealtime s[{STAMP0+2*k}:{STAMP0+2*k+1}]")

    def stamps_out(self, n=14):
        if not self.p.diag:
            return
        self("s_waitcnt lgkmcnt(0)")
        self(f"s_lshl_b32 s{T0}, s2, 4")
        self(f"s_add_u32 s{T0}, s{T0}, s{SW}")
        self(f"s_lshl_b32 s{T0}, s{T0}, 6")
        self(f"s_add_u32 s{T0}, s{T0}, {WS_TS}")
        self("s_mov_b64 exec, 1")
        self("v_mov_b32 v5, 0")
        for k in range(n):
            self(f"v_mov_b32 v4, s{STAMP0+2*k}")
            self(f"buffer_store_dword v4, v5, s[{WS}:{WS+3}], s{T0} offen offset:{4*k}")
        self("s_mov_b64 exec, -1")

    def stamps_init(self, n=14):
        if self.p.diag:
            for k in range(1, n):
                self(f"s_mov_b32 s{STAMP0+2*k}, 0")

    def init_sync(self):
        self("s_waitcnt lgkmcnt(0)")
        self(f"s_add_u32 s{STAG}, s{SEP}, 1")
        self(f"s_and_b32 s{STAG}, s{STAG}, 0xff")
        self(f"v_mov_b32 v{VTAG}, s{STAG}")
        self("s_barrier")

    def signal(self, cnt, t0=4, t1=5):
        self(f"v_mov_b32 v{t0}, {L_CNT+cnt}")
        self(f"v_mov_b32 v{t1}, 1")
        self("s_mov_b64 exec, 1")
        self(f"ds_add_u32 v{t0}, v{t1}")
        self("s_mov_b64 exec, -1")

    def wait_cnt(self, cnt, n, t0=4, t1=5, sleep=0):
        lab = self.newlabel("LW")
        self(f"v_mov_b32 v{t0}, {L_CNT+cnt}")
        self(f"s_mov_b32 s{SCNT}, 0")
        if self.p.prio:
            self("s_setprio 0")
        self.label(lab)
        if self.p.lsleep:
            self(f"s_sleep {self.p.lsleep}")
        self(f"ds_read_b32 v{t1}, v{t0}")
        self(f"s_add_u32 s{SCNT}, s{SCNT}, 1")
        self(f"s_cmp_gt_u32 s{SCNT}, {self.p.LLIMIT}")
        self("s_cbranch_scc1 L_end")
        self("s_waitcnt lgkmcnt(0)")
        self(f"v_readfirstlane_b32 s{T7}, v{t1}")
        self(f"s_cmp_lt_u32 s{T7}, {n}")
        self(f"s_cbranch_scc1 {lab}")
        if self.p.prio:
            self("s_setprio 3")

    def loads(self, lst, win, already=0):
        out = already
        for it in lst:
            n = 1
            if isinstance(it, tuple):
                it, n = it
            if win is not None and out + n > win:
                self(f"s_waitcnt vmcnt({max(win-n,0)})")
                out = max(win - n, 0)
            self(it)
            out += n
        return out

    def tile_loads(self, srd, voff, sbase, rs, dst, rows=None, flags="nt", tmp=T6):
        r = []
        for i in range(8):
            row = i if rows is None else rows[i]
            off = row * rs
            if off < 4096:
                r.append(f"buffer_load_dwordx4 v[{dst+4*i}:{dst+4*i+3}], v{voff}, s[{srd}:{srd+3}], s{sbase} offen offset:{off} {flags}")
            else:
                r.append(f"s_add_u32 s{tmp}, s{sbase}, {off}\n"
                         f"buffer_load_dwordx4 v[{dst+4*i}:{dst+4*i+3}], v{voff}, s[{srd}:{srd+3}], s{tmp} offen {flags}")
        return r

    def perm(self, src, dst):
        for d in range(4):
            for q in range(4):
                a = src + 4 * (2 * q) + d
                b = src + 4 * (2 * q + 1) + d
                self(f"v_perm_b32 v{dst+4*(2*d)+q}, v{b}, v{a}, s{SLO}")
                self(f"v_perm_b32 v{dst+4*(2*d+1)+q}, v{b}, v{a}, s{SHI}")

    def mfma(self, acc, af, F, first):
        for t in range(8):
            c = "0" if first else f"v[{acc+4*t}:{acc+4*t+3}]"
            self(f"v_mfma_f32_16x16x32_bf16 v[{acc+4*t}:{acc+4*t+3}], v[{af}:{af+3}], v[{F+4*t}:{F+4*t+3}], {c}")

    def diag_add(self, acc):
        for t in range(4):
            for r in range(4):
                x1, x2 = acc + 4 * t + r, acc + 4 * (t + 4) + r
                self(f"v_permlane32_swap_b32 v{x1}, v{x2}")
        for t in range(4):
            for r in range(4):
                x1, x2 = acc + 4 * t + r, acc + 4 * (t + 4) + r
                self(f"v_add_f32_dpp v{x1}, v{x2}, v{x1} row_ror:8 row_mask:0xf bank_mask:0xf")
        for t in range(2):
            for r in range(4):
                self(f"v_mov_b32_dpp v{acc+4*t+r}, v{acc+4*(t+2)+r} row_ror:8 row_mask:0xf bank_mask:0xc")

    def tagf(self, regs):
        for r in regs:
            self(f"v_bfi_b32 v{r}, s{SFF}, v{VTAG}, v{r}")

    def pub(self, quad, voff, sbase, off=0, local=False, tmp=T6):
        o = f" offset:{off}" if off else ""
        if local and self.p.local:
            self(f"buffer_store_dwordx4 v[{quad}:{quad+3}], v{voff}, s[{WS}:{WS+3}], s{sbase} offen{o}")
            return 1
        elif local:
            self(f"s_add_u32 s{tmp}, s{sbase}, {GOFF}")
            self(f"buffer_store_dwordx4 v[{quad}:{quad+3}], v{voff}, s[{WS}:{WS+3}], s{tmp} offen{o} sc1")
            return 1
        self(f"buffer_store_dwordx4 v[{quad}:{quad+3}], v{voff}, s[{WS}:{WS+3}], s{sbase} offen{o} sc1")
        return 1

    def pub_g(self, quad, voff, sbase, off=0, tmp=T6):
        if not self.p.local:
            return 0
        o = f" offset:{off}" if off else ""
        self(f"s_add_u32 s{tmp}, s{sbase}, {GOFF}")
        self(f"buffer_store_dwordx4 v[{quad}:{quad+3}], v{voff}, s[{WS}:{WS+3}], s{tmp} offen{o} sc1")
        return 1

    def poll(self, lds, sbase, local=False, acc=4, execs=None, pre=None, galt=None):
        done = self.newlabel("LD")
        phases = []
        if local and self.p.local:
            phases.append((lds, sbase, 0, self.p.NLOCAL, None))
        if local:
            if galt:
                phases.append((galt[0], galt[1], GOFF, self.p.LIMIT, galt[2]))
            else:
                phases.append((lds, sbase, GOFF, self.p.LIMIT, None))
        else:
            phases.append((lds, sbase, 0, self.p.LIMIT, None))
        nxt = None
        for ph, (ll, sb0, add, lim, prep) in enumerate(phases):
            last = ph == len(phases) - 1
            lab = self.newlabel("LP")
            if nxt:
                self.label(nxt)
            if prep:
                prep()
            self(f"s_mov_b32 s{SCNT}, 0")
            if add:
                self(f"s_add_u32 s{SB_}, s{sb0}, {add}")
                base = SB_
            else:
                base = sb0
            self.label(lab)
            if self.p.psleep:
                self(f"s_sleep {self.p.psleep}")
            if pre:
                pre()
            for k, (dst, voff, off, ex) in enumerate(ll):
                sb = base
                if ex is not None:
                    self(f"s_add_u32 s{T6}, s{base}, {ex}")
                    sb = T6
                o = f" offset:{off}" if off else ""
                if execs and k in execs:
                    self(execs[k])
                self(f"buffer_load_dwordx4 v[{dst}:{dst+3}], v{voff}, s[{WS}:{WS+3}], s{sb} offen{o} sc1")
                if execs and k in execs:
                    self("s_mov_b64 exec, -1")
            self(f"s_add_u32 s{SCNT}, s{SCNT}, 1")
            for k, (dst, voff, off, ex) in enumerate(ll):
                self(f"s_waitcnt vmcnt({len(ll)-1-k})")
                for q in range(4):
                    self(f"v_xor_b32 v{dst+q}, v{VTAG}, v{dst+q}")
                if k == 0:
                    self(f"v_or3_b32 v{acc}, v{dst}, v{dst+1}, v{dst+2}")
                    self(f"v_or_b32 v{acc}, v{acc}, v{dst+3}")
                else:
                    self(f"v_or3_b32 v{acc}, v{acc}, v{dst}, v{dst+1}")
                    self(f"v_or3_b32 v{acc}, v{acc}, v{dst+2}, v{dst+3}")
            self(f"v_and_b32 v{acc}, 0xff, v{acc}")
            self(f"v_cmp_ne_u32 vcc, 0, v{acc}")
            self(f"s_cbranch_vccz {done}")
            self(f"s_cmp_lt_u32 s{SCNT}, {lim}")
            self(f"s_cbranch_scc1 {lab}")
            if last:
                self("s_branch L_end")
            else:
                nxt = self.newlabel("LN")
        self.label(done)

    def rnd(self, a):
        self(f"v_cvt_pk_bf16_f32 v{a}, v{a}, v{a}")
        self(f"v_and_b32 v{a}, 0xffff0000, v{a}")

    def rnd2(self, a, b, t):
        self(f"v_cvt_pk_bf16_f32 v{t}, v{a}, v{b}")
        self(f"v_lshlrev_b32 v{a}, 16, v{t}")
        self(f"v_and_b32 v{b}, 0xffff0000, v{t}")

    def rnd_tag(self, a):
        self(f"v_cvt_pk_bf16_f32 v{a}, v{a}, v{a}")
        self(f"v_and_or_b32 v{a}, v{a}, s{SHM}, v{VTAG}")

    def bfly(self, v, t, op, bits=(3, 4, 5)):
        for b in bits:
            if b == 0:
                self(f"{op}_dpp v{v}, v{v}, v{v} quad_perm:[1,0,3,2] row_mask:0xf bank_mask:0xf")
            elif b == 1:
                self(f"{op}_dpp v{v}, v{v}, v{v} quad_perm:[2,3,0,1] row_mask:0xf bank_mask:0xf")
            elif b == 2:
                self(f"{op}_dpp v{v}, v{v}, v{v} row_half_mirror row_mask:0xf bank_mask:0xf")
            elif b == 3:
                self(f"{op}_dpp v{v}, v{v}, v{v} row_ror:8 row_mask:0xf bank_mask:0xf")
            elif b == 4:
                self(f"v_mov_b32 v{t}, v{v}")
                self(f"v_permlane16_swap_b32 v{v}, v{t}")
                self(f"{op} v{v}, v{v}, v{t}")
            elif b == 5:
                self(f"v_mov_b32 v{t}, v{v}")
                self(f"v_permlane32_swap_b32 v{v}, v{t}")
                self(f"{op} v{v}, v{v}, v{t}")

    def packed_red2(self, A, B):
        for q in range(4):
            self(f"v_add_f32_dpp v{A+q}, v{A+q}, v{A+q} row_ror:8 row_mask:0xf bank_mask:0xf")
            self(f"v_add_f32_dpp v{B+q}, v{B+q}, v{B+q} row_ror:8 row_mask:0xf bank_mask:0xf")
        for q in range(4):
            self(f"v_permlane32_swap_b32 v{A+q}, v{B+q}")
        for q in range(4):
            self(f"v_add_f32 v{A+q}, v{A+q}, v{B+q}")
        self(f"v_permlane16_swap_b32 v{A}, v{A+1}")
        self(f"v_permlane16_swap_b32 v{A+2}, v{A+3}")
        self(f"v_add_f32 v{A}, v{A}, v{A+1}")
        self(f"v_add_f32 v{A+2}, v{A+2}, v{A+3}")
        self(f"v_permlane32_swap_b32 v{A}, v{A+2}")

    def packed_red1(self, A, op="v_add_f32"):
        for q in range(4):
            self(f"{op}_dpp v{A+q}, v{A+q}, v{A+q} row_ror:8 row_mask:0xf bank_mask:0xf")
        self(f"v_permlane32_swap_b32 v{A}, v{A+2}")
        self(f"v_permlane32_swap_b32 v{A+1}, v{A+3}")
        self(f"{op} v{A}, v{A}, v{A+2}")
        self(f"{op} v{A+1}, v{A+1}, v{A+3}")
        self(f"v_permlane16_swap_b32 v{A}, v{A+1}")
        self(f"{op} v{A}, v{A}, v{A+1}")

    def quad_gather(self, src, dst):
        for q in range(4):
            self(f"v_mov_b32_dpp v{dst+q}, v{src} quad_perm:[{q},{q},{q},{q}] row_mask:0xf bank_mask:0xf")

    def silu(self, x, t):
        self(f"v_mul_f32 v{t}, 0xbfb8aa3b, v{x}")
        self(f"v_exp_f32 v{t}, v{t}")
        self(f"v_add_f32 v{t}, 1.0, v{t}")
        self(f"v_rcp_f32 v{t}, v{t}")
        self(f"v_mul_f32 v{x}, v{x}, v{t}")

    def d64_voff(self, vd, rs, t0):
        self(f"v_lshrrev_b32 v{t0}, 3, v{VC}")
        self(f"v_lshl_add_u32 v{t0}, v{t0}, 2, v{VG}")
        self(f"s_mov_b32 s{T6}, {8*rs}")
        self(f"v_mul_lo_u32 v{t0}, v{t0}, s{T6}")
        self(f"v_and_b32 v{vd}, 7, v{VC}")
        self(f"v_lshl_add_u32 v{vd}, v{vd}, 4, v{t0}")

    def afrag_voff(self, vd, rowbytes, esz, t0):
        self(f"v_lshrrev_b32 v{t0}, 3, v{VC}")
        self(f"v_lshl_add_u32 v{t0}, v{t0}, 2, v{VG}")
        self(f"v_lshlrev_b32 v{t0}, {3 + (esz.bit_length()-1)}, v{t0}")
        self(f"v_and_b32 v{vd}, 7, v{VC}")
        self(f"s_mov_b32 s{T6}, {rowbytes}")
        self(f"v_mul_lo_u32 v{vd}, v{vd}, s{T6}")
        self(f"v_add_u32 v{vd}, v{vd}, v{t0}")

    def hx_voff(self, vd, t0):
        self(f"v_lshrrev_b32 v{t0}, 3, v{VC}")
        self(f"v_lshl_add_u32 v{t0}, v{t0}, 2, v{VG}")
        self(f"v_lshlrev_b32 v{t0}, 8, v{t0}")
        self(f"v_and_b32 v{vd}, 7, v{VC}")
        self(f"v_lshl_add_u32 v{vd}, v{vd}, 4, v{t0}")

    def pack8(self, src, dst):
        for q in range(4):
            self(f"v_perm_b32 v{dst+q}, v{src+2*q+1}, v{src+2*q}, s{SHI}")

    def red_lane(self, vb, vcol, t):
        self(f"v_bfe_u32 v{t}, v{VL}, 2, 1")
        self(f"v_lshl_add_u32 v{vb}, v{t}, 2, v{VG}")
        self(f"v_and_b32 v{vcol}, 3, v{VL}")


EX_V = "0x0011001100110011"


def set_exec64(A, val):
    v = int(val, 16)
    A(f"s_mov_b32 exec_lo, {v & 0xffffffff:#x}")
    A(f"s_mov_b32 exec_hi, {v >> 32:#x}")


def ln_finish(A, mean, var, t):
    A.rnd2(mean, var, t)
    A(f"v_add_f32 v{var}, 0x3727c5ac, v{var}")
    A.rnd(var)
    A(f"v_sqrt_f32 v{var}, v{var}")
    A.rnd(var)
    A(f"v_rcp_f32 v{t}, v{var}")
    A(f"v_fma_f32 v{var}, -v{var}, v{t}, 1.0")
    A(f"v_fma_f32 v{var}, v{var}, v{t}, v{t}")


def m_stage(A, m, stage_reg, acc, af, vst, sbase_mp):
    A.perm(stage_reg, R0)
    A.mfma(acc, af, R0, True)
    A.diag_add(acc)
    A.tagf(range(acc, acc + 8))
    if A.p.local:
        A(f"s_add_u32 s{T5}, s{sbase_mp}, {WS_MP + m * 8 * 131072}")
        A.pub(acc, vst, T5, 0, local=True)
        A.pub(acc + 4, vst, T5, 16, local=True)
    A(f"s_add_u32 s{T5}, s{SPG}, {GOFF + WS_MP + m * 8 * 131072}")
    A.pub(acc, 26, T5, 0)
    A.pub(acc + 4, 26, T5, 1024)


def mp_gather(A, m):
    A(f"s_lshl_b32 s{T3}, s{SJ}, 17")
    A(f"s_lshl_b32 s{T1}, s{SI}, 12")
    A(f"s_add_u32 s{T2}, s{T3}, {WS_MP + m*8*131072}")
    A(f"s_add_u32 s{T3}, s{T2}, s{T1}")

    def prep():
        A(f"s_lshr_b32 s{T1}, s{SI}, 4")
        A(f"s_lshl_b32 s{T1}, s{T1}, 16")
        A(f"s_add_u32 s{T2}, s{T2}, s{T1}")
        A(f"s_bfe_u32 s{T1}, s{SI}, 0x30001")
        A(f"s_lshl_b32 s{T1}, s{T1}, 4")
        A(f"s_add_u32 s{T2}, s{T2}, s{T1}")
        A(f"s_and_b32 s{T1}, s{SI}, 1")
        A(f"s_lshl_b32 s{T1}, s{T1}, 9")
        A(f"s_add_u32 s{T2}, s{T2}, s{T1}")
        A(f"v_lshrrev_b32 v7, 3, v{VL}")
        A("v_lshlrev_b32 v7, 11, v7")
        A(f"v_bfe_u32 v5, v{VL}, 2, 1")
        A("v_lshl_add_u32 v7, v5, 8, v7")
        A(f"v_bfe_u32 v5, v{VL}, 1, 1")
        A("v_lshl_add_u32 v7, v5, 7, v7")
        A(f"v_and_b32 v5, 1, v{VL}")
        A("v_lshl_add_u32 v7, v5, 10, v7")
    A(f"v_lshlrev_b32 v6, 4, v{VL}")
    lds = [(R0 + 4 * u, 6, 1024 * u, None) for u in range(4)]
    gl = [(R0 + 4 * u, 7, 0, 16384 * u if u else None) for u in range(4)]
    A.poll(lds, T3, local=True, acc=4, galt=(gl, T2, prep))


def reduce_gather(A, sbase, nload, dst=8, voff=6, last_half=False):
    A(f"v_lshlrev_b32 v{voff}, 4, v{VL}")
    lds = [(dst + 4 * u, voff, 1024 * u, None) for u in range(nload)]
    execs = None
    pre = None
    if last_half:
        execs = {nload - 1: "s_mov_b32 exec_lo, -1\ns_mov_b32 exec_hi, 0"}

        def pre():
            for q in range(4):
                A(f"v_mov_b32 v{dst+4*(nload-1)+q}, v{VTAG}")
    A.poll(lds, sbase, local=True, acc=4, execs=execs, pre=pre)


def t128_stage(A, src_base, kspec, cnt, lred, dst_region, pidx_sreg, nm):
    A.poll([(8, 6, 0, None), (12, 6, 16, None)], T3, local=False, acc=4)
    A.stamp(nm)
    A.pack8(8, 16)
    A.mfma(R1, 16, R0, True)
    A(f"v_lshlrev_b32 v6, 8, v{VC}")
    A(f"v_lshl_add_u32 v6, v{VG}, 4, v6")
    A(f"s_lshl_b32 s{T0}, s{SW}, 12")
    A(f"s_add_u32 s{T0}, s{T0}, {lred}")
    A(f"v_add_u32 v6, s{T0}, v6")
    A("s_mov_b32 exec_lo, -1\ns_mov_b32 exec_hi, 0")
    for t in range(8):
        A(f"ds_write_b128 v6, v[{R1+4*t}:{R1+4*t+3}] offset:{32*t}")
    A("s_mov_b64 exec, -1")
    A.signal(cnt)
    A.wait_cnt(cnt, 4)
    A(f"s_lshl_b32 s{T0}, s{SW}, 10")
    A(f"v_lshlrev_b32 v6, 4, v{VL}")
    A(f"v_add_u32 v6, s{T0}, v6")
    for u in range(4):
        A(f"ds_read_b128 v[{8+4*u}:{11+4*u}], v6 offset:{lred + 4096*u}")
    A(f"v_lshrrev_b32 v7, 3, v{VL}")
    A(f"v_lshlrev_b32 v7, 12, v7")
    A(f"v_and_b32 v5, 1, v{VL}")
    A(f"v_lshl_add_u32 v7, v5, 6, v7")
    A(f"v_bfe_u32 v5, v{VL}, 1, 2")
    A(f"v_lshl_add_u32 v7, v5, 4, v7")
    A(f"s_lshl_b32 s{T0}, s{SJ}, 17")
    A(f"s_lshl_b32 s{T1}, s{SW}, 15")
    A(f"s_add_u32 s{T0}, s{T0}, s{T1}")
    A(f"s_lshl_b32 s{T1}, s{pidx_sreg}, 7")
    A(f"s_add_u32 s{T0}, s{T0}, s{T1}")
    A(f"s_add_u32 s{T0}, s{T0}, {dst_region}")
    A("s_waitcnt lgkmcnt(0)")
    for q in range(4):
        A(f"v_add_f32 v{8+q}, v{8+q}, v{12+q}")
        A(f"v_add_f32 v{16+q}, v{16+q}, v{20+q}")
    for q in range(4):
        A(f"v_add_f32 v{8+q}, v{8+q}, v{16+q}")
    A.tagf(range(8, 12))
    A.pub(8, 7, T0, 0, local=True)
    A.pub_g(8, 7, T0, 0)
    A.stamp(nm + 1)


def role_C(A):
    p = A.p
    A.label("L_C")
    A.srd(D1, S_WM, 12582912)
    A.srd(D2, S_C, 16384)
    A(f"s_cmp_ge_u32 s{SW}, 2")
    A("s_cbranch_scc1 L_C23")
    A(f"s_lshr_b32 s{T0}, s{SI}, 2")
    A(f"s_and_b32 s{T1}, s{SI}, 1")
    A(f"s_bfe_u32 s{T2}, s{SI}, 0x10001")
    A(f"s_lshl_b32 s{T3}, s{T0}, 1")
    A(f"s_add_u32 s{T3}, s{T3}, s{SW}")
    A.afrag_voff(6, 2048, 2, 5)
    A(f"s_lshl_b32 s{T4}, s{T3}, 7")
    A(f"buffer_load_dwordx4 v[8:11], v6, s[{D2}:{D2+3}], s{T4} offen")
    A.d64_voff(7, 12288, 5)
    A(f"s_mul_i32 s67, s{T3}, {64*12288}")
    A(f"s_lshl_b32 s{T4}, s{SJ}, 8")
    A(f"s_add_u32 s67, s67, s{T4}")
    A(f"s_lshl_b32 s{T4}, s{T1}, 7")
    A(f"s_add_u32 s67, s67, s{T4}")
    A(f"s_lshl_b32 s{T4}, s{T2}, 11")
    A(f"s_add_u32 s{T4}, s67, s{T4}")
    A.loads(A.tile_loads(D1, 7, T4, 12288, R1), None)
    A(f"s_lshl_b32 s68, s{SJ}, 17")
    A(f"s_lshl_b32 s{T4}, s{T1}, 16")
    A(f"s_add_u32 s68, s68, s{T4}")
    A(f"s_lshl_b32 s{T4}, s{T2}, 11")
    A(f"s_add_u32 s68, s68, s{T4}")
    A(f"s_lshl_b32 s{T4}, s{T3}, 7")
    A(f"s_add_u32 s68, s68, s{T4}")
    A(f"s_mov_b32 s69, s{T2}")
    A(f"s_lshl_b32 s{SPG}, s{T1}, 5")
    A(f"s_lshl_b32 s{T4}, s{T2}, 4")
    A(f"s_add_u32 s{SPG}, s{SPG}, s{T4}")
    A(f"s_add_u32 s{SPG}, s{SPG}, s{T3}")
    A(f"s_lshl_b32 s{SPG}, s{SPG}, 11")
    A(f"s_lshl_b32 s{T4}, s{SJ}, 17")
    A(f"s_add_u32 s{SPG}, s{SPG}, s{T4}")
    A(f"v_lshlrev_b32 v26, 4, v{VL}")
    A(f"v_and_b32 v4, 7, v{VC}")
    A(f"v_lshrrev_b32 v5, 1, v{VG}")
    A(f"v_lshl_add_u32 v4, v4, 1, v5")
    A(f"v_lshlrev_b32 v24, 12, v4")
    A(f"v_and_b32 v4, 1, v{VG}")
    A(f"v_lshl_add_u32 v24, v4, 6, v24")
    A(f"v_lshrrev_b32 v4, 3, v{VC}")
    A(f"v_lshl_add_u32 v24, v4, 5, v24")
    A.init_sync()
    A("s_waitcnt vmcnt(8)")
    for d in range(4):
        A(f"v_lshlrev_b32 v{12+2*d}, 16, v{8+d}")
        A(f"v_and_b32 v{13+2*d}, 0xffff0000, v{8+d}")
    for q in range(8):
        A.silu(12 + q, 4 + (q & 1))
    for q in range(4):
        A(f"v_cvt_pk_bf16_f32 v{28+q}, v{12+2*q}, v{13+2*q}")
    A("s_waitcnt vmcnt(0)")
    A.stamp(1)
    m_stage(A, 0, R1, R2, 28, 24, 68)
    A.signal(E_M0)
    A.stamp(2)
    A.wait_cnt(C_KV, 4)
    A.stamp(3)
    A(f"s_lshl_b32 s{T4}, s69, 11")
    A(f"s_add_u32 s{T4}, s{T4}, {3*2048}")
    A(f"s_add_u32 s{T4}, s{T4}, s67")
    A(f"s_mul_i32 s{T3}, s69, {3*2048}")
    A(f"s_add_u32 s{T3}, s{T3}, {2*2048}")
    A(f"s_add_u32 s{T3}, s{T3}, s67")
    A("s_waitcnt vmcnt(0)")
    out = A.loads(A.tile_loads(D1, 7, T4, 12288, R1) + A.tile_loads(D1, 7, T3, 12288, R2), p.WIN_C)
    A("s_waitcnt vmcnt(8)")
    m_stage(A, 2, R1, R1, 28, 24, 68)
    wo_prep(A)
    A(f"s_waitcnt vmcnt(0)")
    A.loads(wo_loads(A), None)
    m_stage(A, 1, R2, R2, 28, 24, 68)
    A.signal(E_M1)
    A("s_branch L_Cwo")
    A.label("L_C23")
    A(f"s_cmp_eq_u32 s{SW}, 2")
    A("s_cbranch_scc1 L_C2")
    A(f"v_lshlrev_b32 v4, 2, v{VL}")
    A("v_mov_b32 v5, 0")
    A(f"ds_write_b32 v4, v5 offset:{L_CNT}")
    if p.prefetch:
        A("s_getpc_b64 s[44:45]")
        A.raw("L_pcbase:")
        A("s_mov_b32 s46, L_end-L_pcbase")
        A("s_mov_b32 s47, 0x20000")
        A(f"v_lshlrev_b32 v4, 4, v{VL}")
        A(f"s_and_b32 s{T0}, s{SI}, 3")
        A(f"s_lshl_b32 s{T0}, s{T0}, 10")
        for k in range(12):
            A(f"s_add_u32 s{T1}, s{T0}, {4096*k}")
            A(f"buffer_load_dwordx4 v[8:11], v4, s[44:47], s{T1} offen")
    A.init_sync()
    A("s_branch L_C23b")
    A.label("L_C2")
    A.srd(D3, S_X, 16384)
    A.red_lane(20, 21, 4)
    A(f"v_lshlrev_b32 v22, 11, v20")
    A(f"v_lshl_add_u32 v22, v21, 1, v22")
    A(f"s_lshl_b32 s{T0}, s{SJ}, 8")
    A(f"s_lshl_b32 s{T1}, s{SI}, 3")
    A(f"s_add_u32 s{T0}, s{T0}, s{T1}")
    A(f"buffer_load_ushort v23, v22, s[{D3}:{D3+3}], s{T0} offen")
    A.init_sync()
    A.wait_cnt(C_ST, 4)
    A(f"v_lshlrev_b32 v4, 3, v20")
    A(f"ds_read_b64 v[24:25], v4 offset:{L_STAT}")
    A("s_waitcnt vmcnt(0) lgkmcnt(0)")
    A("v_lshlrev_b32 v23, 16, v23")
    A("v_sub_f32 v23, v23, v24")
    A.rnd(23)
    A("v_mul_f32 v23, v23, v25")
    A.rnd(23)
    A(f"v_lshlrev_b32 v22, 4, v20")
    A(f"s_lshl_b32 s{T4}, s{T0}, 4")
    A(f"s_add_u32 s{T4}, s{T4}, {WS_H}")
    A.wait_cnt(E_M0, 2)
    A.stamp(1)
    mp_gather(A, 0)
    A.stamp(2)
    for q in range(4):
        A(f"v_add_f32 v{R0+q}, v{R0+q}, v{R0+4+q}")
        A(f"v_add_f32 v{R0+8+q}, v{R0+8+q}, v{R0+12+q}")
    A.packed_red2(R0, R0 + 8)
    A.rnd2(R0, R0 + 2, 4)
    A(f"v_add_f32 v{R0+2}, 1.0, v{R0+2}")
    A.rnd(R0 + 2)
    A(f"v_mul_f32 v23, v23, v{R0+2}")
    A.rnd(23)
    A(f"v_add_f32 v23, v23, v{R0}")
    A.rnd_tag(23)
    A.quad_gather(23, 8)
    set_exec64(A, EX_V)
    A.pub(8, 22, T4)
    A("s_mov_b64 exec, -1")
    A.signal(E_H)
    A.stamp(3)
    A.label("L_C23b")
    A.wait_cnt(C_KV, 4)
    wo_prep(A)
    A("s_waitcnt vmcnt(0)")
    A.loads(wo_loads(A), None)
    A.label("L_Cwo")
    A("s_waitcnt vmcnt(0)")
    A.signal(C_C)
    A.stamp(4)
    A.perm(R1, R0)
    A(f"v_and_b32 v6, 7, v{VC}")
    A("v_lshlrev_b32 v6, 14, v6")
    A(f"v_lshl_add_u32 v6, v{VG}, 5, v6")
    A(f"s_lshl_b32 s{T3}, s{SI}, 9")
    A(f"s_lshl_b32 s{T0}, s{SW}, 7")
    A(f"s_add_u32 s{T3}, s{T3}, s{T0}")
    A(f"s_add_u32 s{T3}, s{T3}, {WS_O}")
    A.wait_cnt(E_AT, 4)
    t128_stage(A, None, None, C_WO, L_CRED, WS_XP, SI, 5)
    A.signal(E_WO)
    A(f"s_cmp_lt_u32 s{SI}, 4")
    A("s_cbranch_scc1 L_fin")
    A.srd(D1, S_WD, 7340032)
    A(f"s_sub_u32 s67, s{SI}, 4")
    A(f"v_lshlrev_b32 v7, 14, v{VG}")
    A(f"v_lshl_add_u32 v7, v{VC}, 4, v7")
    A(f"s_lshl_b32 s{T0}, s67, 2")
    A(f"s_add_u32 s{T0}, s{T0}, s{SW}")
    A(f"s_lshl_b32 s{T4}, s{T0}, 16")
    A(f"s_lshl_b32 s{T1}, s{SJ}, 8")
    A(f"s_add_u32 s{T4}, s{T4}, s{T1}")
    A.loads(A.tile_loads(D1, 7, T4, 2048, R2), None)
    A(f"v_and_b32 v6, 7, v{VC}")
    A("v_lshlrev_b32 v6, 14, v6")
    A(f"v_lshl_add_u32 v6, v{VG}, 5, v6")
    A(f"s_lshl_b32 s{T3}, s{T0}, 7")
    A(f"s_add_u32 s{T3}, s{T3}, {WS_ACT}")
    A("s_waitcnt vmcnt(0)")
    A.stamp(7)
    A.perm(R2, R0)
    A.wait_cnt(E_X1, 1)
    t128_stage(A, None, None, C_WD, L_CRED2, WS_YP, 67, 8)
    A.signal(E_WD)
    A("s_branch L_fin")


def wo_prep(A):
    A.srd(D2, S_WO, 8388608)
    A(f"s_lshr_b32 s{T0}, s{SI}, 2")
    A(f"s_lshl_b32 s{T0}, s{T0}, 9")
    A(f"s_and_b32 s{T1}, s{SI}, 3")
    A(f"s_lshl_b32 s{T1}, s{T1}, 5")
    A(f"s_add_u32 s{T0}, s{T0}, s{T1}")
    A(f"s_lshl_b32 s{T1}, s{SW}, 3")
    A(f"s_add_u32 s{T0}, s{T0}, s{T1}")
    A(f"s_lshl_b32 s{T2}, s{T0}, 11")
    A(f"s_lshl_b32 s{T1}, s{SJ}, 8")
    A(f"s_add_u32 s{T2}, s{T2}, s{T1}")
    A(f"v_lshlrev_b32 v25, 12, v{VG}")
    A(f"v_lshl_add_u32 v25, v{VC}, 4, v25")


def wo_loads(A):
    rows = [(r & 3) * 128 + (r >> 2) for r in range(8)]
    return A.tile_loads(D2, 25, T2, 2048, R1, rows=rows)


def ln_stats_x(A):
    U = R1
    for d in range(16):
        A(f"v_lshlrev_b32 v{U+2*d}, 16, v{8+d}")
        A(f"v_and_b32 v{U+2*d+1}, 0xffff0000, v{8+d}")
    A(f"v_add_f32 v4, v{U}, v{U+1}")
    A(f"v_add_f32 v5, v{U+2}, v{U+3}")
    for k in range(4, 32, 2):
        A(f"v_add_f32 v4, v4, v{U+k}")
        A(f"v_add_f32 v5, v5, v{U+k+1}")
    A("v_add_f32 v4, v4, v5")
    A.bfly(4, 5, "v_add_f32", bits=(0, 1, 2, 3, 4))
    A("v_mul_f32 v4, 0x3a800000, v4")
    A("v_mov_b32 v6, 0")
    A("v_mov_b32 v7, 0")
    for k in range(0, 32, 2):
        A(f"v_sub_f32 v{U+k}, v{U+k}, v4")
        A(f"v_sub_f32 v{U+k+1}, v{U+k+1}, v4")
        A(f"v_fmac_f32 v6, v{U+k}, v{U+k}")
        A(f"v_fmac_f32 v7, v{U+k+1}, v{U+k+1}")
    A("v_add_f32 v6, v6, v7")
    A.bfly(6, 5, "v_add_f32", bits=(0, 1, 2, 3, 4))
    A("v_mul_f32 v5, 0x3a800000, v6")
    ln_finish(A, 4, 5, 6)
    A(f"s_sub_u32 s{T0}, s{SW}, 4")
    A(f"s_lshl_b32 s{T0}, s{T0}, 4")
    A(f"v_lshrrev_b32 v6, 5, v{VL}")
    A("v_lshlrev_b32 v6, 3, v6")
    A(f"v_add_u32 v6, s{T0}, v6")
    A("s_mov_b32 exec_lo, 1")
    A("s_mov_b32 exec_hi, 1")
    A(f"ds_write_b64 v6, v[4:5] offset:{L_STAT}")
    A("s_mov_b64 exec, -1")
    A.signal(C_ST)


def role_A(A):
    p = A.p
    A.label("L_A")
    A.srd(D1, S_X, 16384)
    A.srd(D2, S_K, 33554432)
    A.srd(D3, S_V, 33554432)
    A(f"s_sub_u32 s{T0}, s{SW}, 4")
    A(f"s_lshl_b32 s{T1}, s{T0}, 12")
    A(f"v_lshlrev_b32 v4, 6, v{VL}")
    for k in range(4):
        A(f"buffer_load_dwordx4 v[{8+4*k}:{11+4*k}], v4, s[{D1}:{D1+3}], s{T1} offen offset:{16*k}")
    A(f"s_lshl_b32 s67, s{SJ}, 2")
    A(f"s_lshr_b32 s{T1}, s{SI}, 3")
    A(f"s_add_u32 s67, s67, s{T1}")
    A(f"s_lshl_b32 s67, s67, 12")
    A(f"s_and_b32 s{T1}, s{SI}, 7")
    A(f"s_lshl_b32 s{T1}, s{T1}, 7")
    A(f"s_add_u32 s67, s67, s{T1}")
    A(f"s_lshl_b32 s{T1}, s{T0}, 5")
    A(f"s_add_u32 s67, s67, s{T1}")
    A(f"s_add_u32 s67, s67, 3072")
    A(f"s_lshl_b32 s67, s67, 8")
    A(f"s_add_u32 s68, s67, 4096")
    A(f"v_lshlrev_b32 v24, 8, v{VC}")
    A(f"v_lshl_add_u32 v24, v{VG}, 4, v24")
    A(f"v_lshlrev_b32 v25, 10, v{VG}")
    A(f"v_lshl_add_u32 v25, v{VC}, 4, v25")
    kv = []
    for kb in range(2):
        for u in range(4):
            kv.append(f"buffer_load_dwordx4 v[{R0+16*kb+4*u}:{R0+16*kb+4*u+3}], v24, s[{D2}:{D2+3}], s{67+kb} offen offset:{64*u} nt")
    kv += A.tile_loads(D3, 25, 67, 256, R2, rows=[0, 1, 2, 3, 16, 17, 18, 19])
    A(f"s_cmp_lt_u32 s{SI}, 8")
    A("s_cbranch_scc1 L_A_s2")
    W = p.WIN_A
    A.loads(kv[:W], None)
    A.init_sync()
    A(f"s_waitcnt vmcnt({W})")
    ln_stats_x(A)
    A.loads(kv[W:], W, already=W)
    A("s_branch L_A_kv")
    A.label("L_A_s2")
    A.init_sync()
    A("s_waitcnt vmcnt(0)")
    ln_stats_x(A)
    A.wait_cnt(C_WQ, 8)
    A.loads(kv, W)
    A.label("L_A_kv")
    A(f"s_waitcnt vmcnt({p.TRIG_A})")
    A.signal(C_KV)
    A("s_waitcnt vmcnt(0)")
    A.stamp(1)
    A.perm(R2, R1)
    A(f"v_and_b32 v6, 7, v{VC}")
    A("v_lshlrev_b32 v6, 9, v6")
    A(f"v_lshl_add_u32 v6, v{VG}, 5, v6")
    A(f"s_lshl_b32 s{T3}, s{SJ}, 14")
    A(f"s_lshr_b32 s{T1}, s{SI}, 3")
    A(f"s_lshl_b32 s{T1}, s{T1}, 12")
    A(f"s_add_u32 s{T3}, s{T3}, s{T1}")
    A(f"s_add_u32 s{T3}, s{T3}, {WS_Q}")
    A(f"s_sub_u32 s{T0}, s{SW}, 4")
    A(f"s_lshl_b32 s{T1}, s{T0}, 7")
    A(f"s_add_u32 s{T3}, s{T3}, s{T1}")
    A(f"v_lshlrev_b32 v7, 4, v{VL}")
    A(f"s_lshl_b32 s{T1}, s{T0}, 10")
    A(f"v_add_u32 v24, s{T1}, v7")
    A.wait_cnt(E_H, 1)
    A.poll([(R2, 6, 0, None), (R2 + 4, 6, 16, None)], T3)
    A.stamp(2)
    A.pack8(R2, R2)
    A(f"ds_write_b128 v24, v[{R2}:{R2+3}] offset:{L_QF}")
    A.signal(E_Q)
    A.wait_cnt(E_Q, 4)
    for u in range(4):
        A(f"ds_read_b128 v[{8+4*u}:{11+4*u}], v7 offset:{L_QF+1024*u}")
    A("s_waitcnt lgkmcnt(0)")
    S = 24
    for kb in range(2):
        for u in range(4):
            c = "0" if u == 0 else f"v[{S+4*kb}:{S+4*kb+3}]"
            A(f"v_mfma_f32_16x16x32_bf16 v[{S+4*kb}:{S+4*kb+3}], v[{R0+16*kb+4*u}:{R0+16*kb+4*u+3}], v[{8+4*u}:{11+4*u}], {c}")
    for k in range(S, S + 8, 2):
        A.rnd2(k, k + 1, 4)
        A(f"v_mul_f32 v{k}, 0x3db504f3, v{k}")
        A(f"v_mul_f32 v{k+1}, 0x3db504f3, v{k+1}")
        A.rnd2(k, k + 1, 5)
    A(f"v_max3_f32 v6, v{S}, v{S+1}, v{S+2}")
    A(f"v_max3_f32 v7, v{S+3}, v{S+4}, v{S+5}")
    A(f"v_max3_f32 v6, v6, v{S+6}, v{S+7}")
    A("v_max_f32 v6, v6, v7")
    A.bfly(6, 5, "v_max_f32", bits=(4, 5))
    for k in range(S, S + 8):
        A(f"v_sub_f32 v{k}, v{k}, v6")
        A(f"v_mul_f32 v{k}, {LOG2E:#x}, v{k}")
        A(f"v_exp_f32 v{k}, v{k}")
    for q in range(4):
        A(f"v_cvt_pk_bf16_f32 v{8+q}, v{S+2*q}, v{S+2*q+1}")
    A.mfma(R2, 8, R1, True)
    A(f"v_add_f32 v7, v{S}, v{S+1}")
    for k in range(S + 2, S + 8):
        A(f"v_add_f32 v7, v7, v{k}")
    A.bfly(7, 5, "v_add_f32", bits=(4, 5))
    A(f"s_sub_u32 s{T0}, s{SW}, 4")
    A(f"s_lshl_b32 s{T1}, s{T0}, 6")
    A(f"v_lshlrev_b32 v4, 2, v{VC}")
    A(f"v_add_u32 v4, s{T1}, v4")
    A("s_mov_b64 exec, 0xff")
    A(f"ds_write_b32 v4, v6 offset:{L_AST}")
    A(f"ds_write_b32 v4, v7 offset:{L_AST+32}")
    A("s_mov_b32 exec_lo, -1\ns_mov_b32 exec_hi, 0")
    A(f"v_lshlrev_b32 v4, 8, v{VC}")
    A(f"v_lshl_add_u32 v4, v{VG}, 4, v4")
    A(f"s_lshl_b32 s{T1}, s{T0}, 12")
    A(f"v_add_u32 v4, s{T1}, v4")
    for t in range(8):
        A(f"ds_write_b128 v4, v[{R2+4*t}:{R2+4*t+3}] offset:{L_ARED+32*t}")
    A("s_mov_b64 exec, -1")
    A.signal(C_A)
    A(f"v_and_b32 v6, 31, v{VL}")
    A(f"v_lshrrev_b32 v7, 5, v{VL}")
    A(f"v_lshlrev_b32 v20, 5, v6")
    A(f"v_lshl_add_u32 v20, v7, 4, v20")
    A(f"s_lshl_b32 s{T1}, s{T0}, 10")
    A(f"v_add_u32 v20, s{T1}, v20")
    A(f"v_lshlrev_b32 v21, 4, v7")
    A(f"v_lshlrev_b32 v22, 14, v7")
    A(f"v_and_b32 v5, 3, v6")
    A(f"v_lshl_add_u32 v22, v5, 10, v22")
    A(f"v_lshrrev_b32 v5, 2, v6")
    A(f"v_lshl_add_u32 v22, v5, 4, v22")
    A(f"s_lshl_b32 s{T3}, s{SJ}, 5")
    A(f"s_and_b32 s{T1}, s{SI}, 24")
    A(f"s_add_u32 s{T3}, s{T3}, s{T1}")
    A(f"s_add_u32 s{T3}, s{T3}, s{T0}")
    A(f"s_lshl_b32 s{T3}, s{T3}, 12")
    A(f"s_and_b32 s{T1}, s{SI}, 7")
    A(f"s_lshl_b32 s{T2}, s{T1}, 7")
    A(f"s_add_u32 s{T3}, s{T3}, s{T2}")
    A(f"s_add_u32 s{T3}, s{T3}, {WS_OPD}")
    A(f"s_lshl_b32 s{T4}, s{SJ}, 2")
    A(f"s_lshr_b32 s{T2}, s{SI}, 3")
    A(f"s_add_u32 s{T4}, s{T4}, s{T2}")
    A(f"s_lshl_b32 s{T4}, s{T4}, 9")
    A(f"s_lshl_b32 s{T2}, s{T1}, 5")
    A(f"s_add_u32 s{T4}, s{T4}, s{T2}")
    A(f"s_add_u32 s{T4}, s{T4}, {WS_OPM}")
    A(f"v_lshlrev_b32 v23, 8, v7")
    A.wait_cnt(C_A, 4)
    M, L, O = R0, R0 + 16, R1
    for w in range(4):
        A(f"ds_read_b128 v[{M+4*w}:{M+4*w+3}], v21 offset:{L_AST+64*w}")
    for w in range(4):
        A(f"ds_read_b128 v[{O+4*w}:{O+4*w+3}], v20 offset:{L_ARED+4096*w}")
    for w in range(4):
        A(f"ds_read_b128 v[{L+4*w}:{L+4*w+3}], v21 offset:{L_AST+64*w+32}")
    A("s_waitcnt lgkmcnt(8)")
    for q in range(4):
        A(f"v_max3_f32 v{8+q}, v{M+q}, v{M+4+q}, v{M+8+q}")
        A(f"v_max_f32 v{8+q}, v{8+q}, v{M+12+q}")
    for w in range(4):
        for q in range(4):
            A(f"v_sub_f32 v{M+4*w+q}, v{M+4*w+q}, v{8+q}")
            A(f"v_mul_f32 v{M+4*w+q}, {LOG2E:#x}, v{M+4*w+q}")
            A(f"v_exp_f32 v{M+4*w+q}, v{M+4*w+q}")
    A("s_waitcnt lgkmcnt(4)")
    for q in range(4):
        A(f"v_mul_f32 v{16+q}, v{O+q}, v{M+q}")
        for w in range(1, 4):
            A(f"v_fmac_f32 v{16+q}, v{O+4*w+q}, v{M+4*w+q}")
    A.tagf(range(16, 20))
    A.pub(16, 22, T3, 0, local=True)
    A("s_waitcnt lgkmcnt(0)")
    for q in range(4):
        A(f"v_mul_f32 v{12+q}, v{L+q}, v{M+q}")
        for w in range(1, 4):
            A(f"v_fmac_f32 v{12+q}, v{L+4*w+q}, v{M+4*w+q}")
    A.tagf(range(8, 16))
    A(f"s_cmp_lg_u32 s{SW}, 4")
    A("s_cbranch_scc1 L_A_nostat")
    A("s_mov_b32 exec_lo, 1")
    A("s_mov_b32 exec_hi, 1")
    A.pub(8, 23, T4, 0, local=True)
    A.pub(12, 23, T4, 16, local=True)
    A.pub_g(8, 23, T4, 0)
    A.pub_g(12, 23, T4, 16)
    A("s_mov_b64 exec, -1")
    A.label("L_A_nostat")
    A.pub_g(16, 22, T3, 0)
    A.signal(E_AT)
    A.stamp(3)
    A(f"s_cmp_eq_u32 s{SW}, 5")
    A("s_cbranch_scc1 L_A1")
    A(f"s_cmp_eq_u32 s{SW}, 6")
    A("s_cbranch_scc1 L_A2")
    A(f"s_cmp_eq_u32 s{SW}, 7")
    A("s_cbranch_scc1 L_fin")
    A(f"v_lshlrev_b32 v6, 4, v{VL}")
    A(f"v_lshrrev_b32 v7, 3, v{VL}")
    A("v_lshlrev_b32 v7, 5, v7")
    A(f"s_lshl_b32 s{T3}, s{SJ}, 5")
    A(f"s_add_u32 s{T3}, s{T3}, s{SI}")
    A(f"s_lshl_b32 s{T4}, s{T3}, 9")
    A(f"s_add_u32 s{T4}, s{T4}, {WS_O}")
    A(f"s_lshr_b32 s{T2}, s{T3}, 2")
    A(f"s_lshl_b32 s{T2}, s{T2}, 8")
    A(f"s_lshl_b32 s{T3}, s{T3}, 12")
    A(f"s_sub_u32 s{T2}, s{T2}, s{T3}")
    A(f"s_add_u32 s{T2}, s{T2}, {WS_OPM - WS_OPD}")
    A(f"s_add_u32 s{T3}, s{T3}, {WS_OPD}")
    A(f"v_add_u32 v7, s{T2}, v7")
    A(f"v_and_b32 v20, 7, v{VL}")
    A(f"v_lshl_add_u32 v20, v20, 2, v{VG}")
    A("v_lshlrev_b32 v20, 4, v20")
    Dd = R0
    A.poll([(8, 7, 0, None), (12, 7, 16, None)] + [(Dd + 4 * u, 6, 1024 * u, None) for u in range(4)], T3, local=True)
    A.stamp(4)
    for q in range(4):
        A(f"v_mov_b32 v{16+q}, v{8+q}")
    for q in range(4):
        A.bfly(16 + q, 24 + q, "v_max_f32")
    for q in range(4):
        A(f"v_sub_f32 v{8+q}, v{8+q}, v{16+q}")
        A(f"v_mul_f32 v{8+q}, {LOG2E:#x}, v{8+q}")
        A(f"v_exp_f32 v{8+q}, v{8+q}")
    for q in range(4):
        A(f"v_mul_f32 v{12+q}, v{12+q}, v{8+q}")
    for u in range(4):
        for q in range(4):
            A(f"v_mul_f32 v{Dd+4*u+q}, v{Dd+4*u+q}, v{8+q}")
    for q in range(4):
        A.bfly(12 + q, 24 + q, "v_add_f32")
    for k in range(16):
        A(f"v_add_f32_dpp v{Dd+k}, v{Dd+k}, v{Dd+k} row_ror:8 row_mask:0xf bank_mask:0xf")
    for q in range(4):
        A(f"v_permlane32_swap_b32 v{Dd+q}, v{Dd+8+q}")
        A(f"v_permlane32_swap_b32 v{Dd+4+q}, v{Dd+12+q}")
    for q in range(4):
        A(f"v_add_f32 v{Dd+q}, v{Dd+q}, v{Dd+8+q}")
        A(f"v_add_f32 v{Dd+4+q}, v{Dd+4+q}, v{Dd+12+q}")
    for q in range(4):
        A(f"v_permlane16_swap_b32 v{Dd+q}, v{Dd+4+q}")
    for q in range(4):
        A(f"v_rcp_f32 v{12+q}, v{12+q}")
        A(f"v_add_f32 v{Dd+q}, v{Dd+q}, v{Dd+4+q}")
    for q in range(4):
        A(f"v_mul_f32 v{Dd+q}, v{Dd+q}, v{12+q}")
        A.rnd_tag(Dd + q)
    A("s_mov_b32 exec_lo, 0x00ff00ff")
    A("s_mov_b32 exec_hi, 0x00ff00ff")
    A.pub(Dd, 20, T4)
    A("s_mov_b64 exec, -1")
    A.stamp(5)
    A("s_branch L_fin")
    A.label("L_A2")
    A.red_lane(20, 21, 4)
    A(f"v_lshlrev_b32 v22, 4, v20")
    A(f"s_lshl_b32 s{T4}, s{SJ}, 12")
    A(f"s_lshl_b32 s{T1}, s{SI}, 7")
    A(f"s_add_u32 s{T4}, s{T4}, s{T1}")
    A(f"s_add_u32 s{T4}, s{T4}, {WS_SB}")
    A.wait_cnt(E_M1, 2)
    mp_gather(A, 2)
    for q in range(4):
        A(f"v_add_f32 v{R0+q}, v{R0+q}, v{R0+4+q}")
        A(f"v_add_f32 v{R0+8+q}, v{R0+8+q}, v{R0+12+q}")
    A.packed_red2(R0, R0 + 8)
    A.rnd(R0 + 2)
    A(f"v_add_f32 v{R0+2}, 1.0, v{R0+2}")
    A.rnd_tag(R0)
    A.rnd_tag(R0 + 2)
    A.quad_gather(R0, 8)
    A.quad_gather(R0 + 2, 12)
    A(f"s_add_u32 s{T3}, s{T4}, {WS_CB - WS_SB}")
    set_exec64(A, EX_V)
    A.pub(8, 22, T4)
    A.pub(12, 22, T3)
    A("s_mov_b64 exec, -1")
    A.signal(E_S)
    A.stamp(4)
    A("s_branch L_fin")
    A.label("L_A1")
    A.red_lane(20, 21, 4)
    A(f"v_lshlrev_b32 v22, 11, v20")
    A(f"v_lshl_add_u32 v22, v21, 1, v22")
    A(f"s_lshl_b32 s67, s{SJ}, 8")
    A(f"s_lshl_b32 s{T1}, s{SI}, 3")
    A(f"s_add_u32 s67, s67, s{T1}")
    A(f"buffer_load_ushort v23, v22, s[{D1}:{D1+3}], s67 offen")
    A(f"s_lshl_b32 s68, s{SJ}, 17")
    A(f"s_lshl_b32 s{T1}, s{SI}, 12")
    A(f"s_add_u32 s68, s68, s{T1}")
    A.wait_cnt(E_M1, 2)
    mp_gather(A, 1)
    for q in range(4):
        A(f"v_add_f32 v{R0+q}, v{R0+q}, v{R0+4+q}")
        A(f"v_add_f32 v{R0+8+q}, v{R0+8+q}, v{R0+12+q}")
    A.packed_red2(R0, R0 + 8)
    A.rnd2(R0, R0 + 2, 4)
    A(f"v_mov_b32 v24, v{R0}")
    A(f"v_mov_b32 v25, v{R0+2}")
    A("v_lshlrev_b32 v23, 16, v23")
    A(f"v_lshlrev_b32 v26, 4, v20")
    A(f"s_lshl_b32 s{T4}, s67, 4")
    A(f"s_add_u32 s{T4}, s{T4}, {WS_X1}")
    A(f"s_add_u32 s{T3}, s68, {WS_XP}")
    A.wait_cnt(E_WO, 4)
    A.stamp(4)
    reduce_gather(A, T3, 4, dst=R0)
    A.stamp(5)
    for q in range(4):
        A(f"v_add_f32 v{R0+q}, v{R0+q}, v{R0+4+q}")
        A(f"v_add_f32 v{R0+8+q}, v{R0+8+q}, v{R0+12+q}")
    for q in range(4):
        A(f"v_add_f32 v{R0+q}, v{R0+q}, v{R0+8+q}")
    A.packed_red1(R0)
    A.rnd(R0)
    A(f"v_mul_f32 v{R0}, v{R0}, v24")
    A.rnd(R0)
    A(f"v_add_f32 v23, v23, v{R0}")
    A.rnd_tag(23)
    A.quad_gather(23, 8)
    set_exec64(A, EX_V)
    A.pub(8, 26, T4)
    A("s_mov_b64 exec, -1")
    A.signal(E_X1)
    A.stamp(6)
    A("v_and_b32 v23, 0xffff0000, v23")
    A.srd(D2, S_OUT, 16384)
    A(f"s_add_u32 s{T3}, s68, {WS_YP}")
    A(f"s_cmp_lt_u32 s{SI}, 4")
    A("s_cbranch_scc1 L_A1f")
    A.wait_cnt(E_WD, 4)
    A.label("L_A1f")
    reduce_gather(A, T3, 4, dst=R0, last_half=True)
    A.stamp(7)
    for q in range(4):
        A(f"v_add_f32 v{R0+q}, v{R0+q}, v{R0+4+q}")
        A(f"v_add_f32 v{R0+8+q}, v{R0+8+q}, v{R0+12+q}")
    for q in range(4):
        A(f"v_add_f32 v{R0+q}, v{R0+q}, v{R0+8+q}")
    A.packed_red1(R0)
    A.rnd(R0)
    A(f"v_mul_f32 v{R0}, v{R0}, v25")
    A.rnd(R0)
    A(f"v_add_f32 v23, v23, v{R0}")
    A("v_cvt_pk_bf16_f32 v23, v23, v23")
    A("s_mov_b32 exec_lo, 0x00ff00ff")
    A("s_mov_b32 exec_hi, 0x00ff00ff")
    A(f"buffer_store_short v23, v22, s[{D2}:{D2+3}], s67 offen")
    A("s_mov_b64 exec, -1")
    A.stamp(8)
    A("s_cmp_lg_u32 s2, 0")
    A("s_cbranch_scc1 L_fin")
    if A.p.dbg:
        A.srd(D3, S_DBG, 256)
        A("s_waitcnt lgkmcnt(0)")
        A("v_mov_b32 v5, 0")
        A("s_mov_b64 exec, 1")
        for k in range(1, 9):
            A(f"s_sub_u32 s{T0}, s{STAMP0+2*k}, s{STAMP0}")
            A(f"v_mov_b32 v4, s{T0}")
            A(f"buffer_store_dword v4, v5, s[{D3}:{D3+3}], 0 offen offset:{4*k}")
        A("s_mov_b64 exec, -1")
    A(f"s_add_u32 s{T0}, s{SEP}, 1")
    A(f"v_mov_b32 v4, s{T0}")
    A("v_mov_b32 v5, 0")
    A("s_mov_b64 exec, 1")
    A(f"buffer_store_dword v4, v5, s[{WS}:{WS+3}], 0 offen sc1")
    A("s_mov_b64 exec, -1")
    A("s_branch L_fin")


def g_reduce_write(A, cnt):
    A(f"v_and_b32 v6, 7, v{VC}")
    A("v_lshlrev_b32 v6, 5, v6")
    A(f"v_lshrrev_b32 v5, 3, v{VC}")
    A("v_lshl_add_u32 v6, v5, 3, v6")
    A(f"v_lshrrev_b32 v5, 1, v{VG}")
    A("v_lshl_add_u32 v6, v5, 4, v6")
    A(f"v_and_b32 v5, 1, v{VG}")
    A("v_lshl_add_u32 v6, v5, 10, v6")
    A(f"s_sub_u32 s{T0}, s{SW}, 8")
    A(f"s_lshl_b32 s{T1}, s{T0}, 11")
    A(f"v_add_u32 v6, s{T1}, v6")


def g_reduce_do(A, cnt):
    for t in range(2):
        for r in range(4):
            A(f"ds_write_b32 v6, v{R2+4*t+r} offset:{L_RED + 256*r + 4*t}")
    A.signal(cnt)
    A.wait_cnt(cnt, 8)


def role_G(A):
    p = A.p
    A.label("L_G")
    A(f"s_sub_u32 s67, s{SW}, 8")
    A(f"s_cmp_ge_u32 s{SI}, 8")
    A("s_cbranch_scc1 L_G_gu")
    A.srd(D1, S_WQ, 8388608)
    A.d64_voff(7, 8192, 5)
    A(f"s_lshl_b32 s68, s{SI}, 3")
    A(f"s_add_u32 s68, s68, s{SJ}")
    A(f"s_lshl_b32 s{T3}, s67, 20")
    A(f"s_lshl_b32 s{T1}, s68, 7")
    A(f"s_add_u32 s{T3}, s{T3}, s{T1}")
    A(f"s_add_u32 s{T4}, s{T3}, {64*8192}")
    ld = A.tile_loads(D1, 7, T3, 8192, R1) + A.tile_loads(D1, 7, T4, 8192, R2)
    W = p.WIN_G
    A.loads(ld[:W], None)
    A.init_sync()
    A.loads(ld[W:], W, already=W)
    A(f"s_waitcnt vmcnt({p.TRIG_G})")
    A.signal(C_WQ)
    A.hx_voff(26, 5)
    g_reduce_write(A, C_G)
    A(f"s_lshl_b32 s{T3}, s67, 12")
    A(f"s_add_u32 s{T3}, s{T3}, {WS_H}")
    A("s_waitcnt vmcnt(0)")
    A.stamp(1)
    A.perm(R1, R0)
    A.perm(R2, R1)
    A.wait_cnt(E_H, 1)
    A.poll([(8, 26, 0, None), (12, 26, 128, None), (16, 26, 2048, None), (20, 26, 2176, None)], T3)
    A.stamp(2)
    A.pack8(8, 8)
    A.pack8(16, 12)
    A.mfma(R2, 8, R0, True)
    A.mfma(R2, 12, R1, False)
    A.diag_add(R2)
    g_reduce_do(A, C_G)
    A(f"v_lshlrev_b32 v6, 4, v{VC}")
    A(f"s_lshl_b32 s{T1}, s67, 8")
    A(f"v_add_u32 v7, s{T1}, v6")
    for w in range(8):
        A(f"ds_read_b128 v[{R0+4*w}:{R0+4*w+3}], v7 offset:{L_RED+2048*w}")
    A(f"s_lshl_b32 s{T4}, s67, 14")
    A(f"s_lshl_b32 s{T1}, s68, 8")
    A(f"s_add_u32 s{T4}, s{T4}, s{T1}")
    A(f"s_add_u32 s{T4}, s{T4}, {WS_Q}")
    A("s_waitcnt lgkmcnt(0)")
    sum8(A, R0)
    for q in range(4):
        A.rnd_tag(R0 + q)
    A("s_mov_b64 exec, 0xffff")
    A.pub(R0, 6, T4)
    A("s_mov_b64 exec, -1")
    A.stamp(3)
    A("s_branch L_fin")
    A.label("L_G_gu")
    A.init_sync()
    A(f"s_cmp_ge_u32 s{SI}, 22")
    A("s_cbranch_scc1 L_fin")
    A.srd(D1, S_WG, 7340032)
    A.srd(D2, S_WU, 7340032)
    A(f"v_lshrrev_b32 v5, 3, v{VC}")
    A(f"v_lshl_add_u32 v5, v5, 2, v{VG}")
    A(f"s_mov_b32 s{T6}, {8*7168}")
    A(f"v_mul_lo_u32 v5, v5, s{T6}")
    A(f"v_and_b32 v7, 3, v{VC}")
    A("v_lshl_add_u32 v7, v7, 4, v5")
    A(f"s_sub_u32 s68, s{SI}, 8")
    A(f"s_lshl_b32 s68, s68, 3")
    A(f"s_add_u32 s68, s68, s{SJ}")
    A(f"s_mul_i32 s{T3}, s67, {128*7168}")
    A(f"s_lshl_b32 s{T1}, s68, 6")
    A(f"s_add_u32 s{T3}, s{T3}, s{T1}")
    ld = []
    for t in range(2):
        for r in range(8):
            dst = (R1, R2)[t] + 4 * r
            off = (64 * t + r) * 7168
            ld.append((f"s_add_u32 s{T6}, s{T3}, {off}\n"
                       f"s_mov_b32 exec_lo, 0x0f0f0f0f\ns_mov_b32 exec_hi, 0x0f0f0f0f\n"
                       f"buffer_load_dwordx4 v[{dst}:{dst+3}], v7, s[{D1}:{D1+3}], s{T6} offen nt\n"
                       f"s_mov_b32 exec_lo, 0xf0f0f0f0\ns_mov_b32 exec_hi, 0xf0f0f0f0\n"
                       f"buffer_load_dwordx4 v[{dst}:{dst+3}], v7, s[{D2}:{D2+3}], s{T6} offen nt\n"
                       f"s_mov_b64 exec, -1", 2))
    A.wait_cnt(C_C, 4)
    A.stamp(1)
    A.loads(ld, 2 * p.WIN_G)
    A.hx_voff(26, 5)
    A(f"s_lshl_b32 s{T3}, s67, 12")
    A(f"s_add_u32 s{T3}, s{T3}, {WS_SB}")
    A("s_waitcnt vmcnt(0)")
    A.stamp(2)
    A.perm(R1, R0)
    A.perm(R2, R1)
    offs = (0, 128, 2048, 2176)
    A.wait_cnt(E_S, 1)
    A.poll([(R2 + 4 * k, 26, offs[k], None) for k in range(4)] +
           [(R2 + 16 + 4 * k, 26, offs[k], WS_CB - WS_SB) for k in range(4)], T3)
    A.stamp(3)
    A(f"s_add_u32 s{T3}, s{T3}, {WS_X1 - WS_SB}")
    A(f"v_and_b32 v27, 7, v{VC}")
    A("v_lshlrev_b32 v27, 3, v27")
    A(f"s_lshl_b32 s{T1}, s67, 6")
    A(f"v_add_u32 v25, s{T1}, v27")
    X = 8
    A.wait_cnt(E_X1, 1)
    A.poll([(X + 4 * k, 26, offs[k], None) for k in range(4)], T3)
    A.stamp(4)
    A(f"v_add_f32 v4, v{X}, v{X+1}")
    A(f"v_add_f32 v5, v{X+2}, v{X+3}")
    for k in range(4, 16, 2):
        A(f"v_add_f32 v4, v4, v{X+k}")
        A(f"v_add_f32 v5, v5, v{X+k+1}")
    A("v_add_f32 v4, v4, v5")
    A.bfly(4, 5, "v_add_f32")
    A("v_mul_f32 v4, 0x3c000000, v4")
    A("v_mov_b32 v5, 0")
    A("v_mov_b32 v7, 0")
    for k in range(0, 16, 2):
        A(f"v_sub_f32 v6, v{X+k}, v4")
        A(f"v_sub_f32 v24, v{X+k+1}, v4")
        A("v_fmac_f32 v5, v6, v6")
        A("v_fmac_f32 v7, v24, v24")
    A("v_add_f32 v5, v5, v7")
    A.bfly(5, 6, "v_add_f32")
    A("s_mov_b64 exec, 0xff")
    A(f"ds_write_b64 v25, v[4:5] offset:{L_ST2}")
    A("s_mov_b64 exec, -1")
    A.signal(C_G2, 6, 7)
    A.wait_cnt(C_G2, 8, 6, 7)
    A("v_mov_b32 v4, 0")
    A("v_mov_b32 v5, 0")
    A("v_mov_b32 v6, 0")
    for h in range(4):
        A(f"ds_read_b64 v[28:29], v27 offset:{L_ST2 + 64*(2*h)}")
        A(f"ds_read_b64 v[30:31], v27 offset:{L_ST2 + 64*(2*h+1)}")
        A("s_waitcnt lgkmcnt(0)")
        if h == 0:
            A("v_mov_b32 v7, v28")
        A("v_sub_f32 v28, v28, v7")
        A("v_sub_f32 v30, v30, v7")
        A("v_add_f32 v4, v4, v28")
        A("v_add_f32 v5, v5, v29")
        A("v_fmac_f32 v6, v28, v28")
        A("v_add_f32 v4, v4, v30")
        A("v_add_f32 v5, v5, v31")
        A("v_fmac_f32 v6, v30, v30")
    A("v_mul_f32 v4, 0x3e000000, v4")
    A("v_mul_f32 v24, v4, v4")
    A("v_fma_f32 v6, -v24, 8.0, v6") if False else A("v_mul_f32 v24, 0x41000000, v24")
    A("v_sub_f32 v6, v6, v24")
    A("v_max_f32 v6, 0, v6")
    A("v_mul_f32 v6, 0x43000000, v6")
    A("v_add_f32 v5, v5, v6")
    A("v_mul_f32 v5, 0x3a800000, v5")
    A("v_add_f32 v4, v4, v7")
    ln_finish(A, 4, 5, 6)
    for k in range(0, 16, 2):
        a, b = X + k, X + k + 1
        A(f"v_sub_f32 v{a}, v{a}, v4")
        A(f"v_sub_f32 v{b}, v{b}, v4")
        A.rnd2(a, b, 6)
        A(f"v_mul_f32 v{a}, v{a}, v5")
        A(f"v_mul_f32 v{b}, v{b}, v5")
        A.rnd2(a, b, 7)
        A(f"v_mul_f32 v{a}, v{a}, v{R2+16+k}")
        A(f"v_mul_f32 v{b}, v{b}, v{R2+16+k+1}")
        A.rnd2(a, b, 6)
        A(f"v_add_f32 v{a}, v{a}, v{R2+k}")
        A(f"v_add_f32 v{b}, v{b}, v{R2+k+1}")
        A(f"v_cvt_pk_bf16_f32 v{24+k//2}, v{a}, v{b}")
    A.mfma(R2, 24, R0, True)
    A.mfma(R2, 28, R1, False)
    g_reduce_write(A, C_G)
    A.diag_add(R2)
    g_reduce_do(A, C_G)
    A(f"v_lshlrev_b32 v6, 4, v{VC}")
    A(f"s_lshl_b32 s{T1}, s67, 8")
    A(f"v_add_u32 v7, s{T1}, v6")
    for w in range(8):
        A(f"ds_read_b128 v[{R0+4*w}:{R0+4*w+3}], v7 offset:{L_RED+2048*w}")
    A(f"s_lshl_b32 s{T4}, s67, 14")
    A(f"s_lshl_b32 s{T1}, s68, 7")
    A(f"s_add_u32 s{T4}, s{T4}, s{T1}")
    A(f"s_add_u32 s{T4}, s{T4}, {WS_ACT}")
    A("s_waitcnt lgkmcnt(0)")
    sum8(A, R0)
    for q in range(4):
        A.rnd(R0 + q)
    for q in range(4):
        A(f"v_mov_b32_dpp v{R0+4+q}, v{R0+q} row_ror:8 row_mask:0xf bank_mask:0xf")
    for q in range(4):
        A.silu(R0 + q, R0 + 8 + q)
        A.rnd(R0 + q)
        A(f"v_mul_f32 v{R0+q}, v{R0+q}, v{R0+4+q}")
        A.rnd_tag(R0 + q)
    A("s_mov_b64 exec, 0xff")
    A.pub(R0, 6, T4)
    A("s_mov_b64 exec, -1")
    A.stamp(5)
    A("s_branch L_fin")


def sum8(A, B):
    for q in range(4):
        A(f"v_add_f32 v{B+q}, v{B+q}, v{B+4+q}")
        A(f"v_add_f32 v{B+8+q}, v{B+8+q}, v{B+12+q}")
        A(f"v_add_f32 v{B+16+q}, v{B+16+q}, v{B+20+q}")
        A(f"v_add_f32 v{B+24+q}, v{B+24+q}, v{B+28+q}")
    for q in range(4):
        A(f"v_add_f32 v{B+q}, v{B+q}, v{B+8+q}")
        A(f"v_add_f32 v{B+16+q}, v{B+16+q}, v{B+24+q}")
    for q in range(4):
        A(f"v_add_f32 v{B+q}, v{B+q}, v{B+16+q}")


def build(p):
    A = Gen(p)
    A.raw(f"; @launch grid=(256,1,1) block=(1024,1,1) lds={LDS_BYTES}")
    A.raw('.amdgcn_target "amdgcn-amd-amdhsa--gfx950"')
    kernel_begin(A, KN)
    A.stamp(0)
    A("s_load_dwordx16 s[4:19], s[0:1], 0")
    A("s_load_dwordx8 s[20:27], s[0:1], 64")
    A("s_load_dwordx4 s[28:31], s[0:1], 96")
    A("s_cmp_ge_u32 s2, 256")
    A("s_cbranch_scc1 L_end")
    A("v_lshrrev_b32 v4, 6, v0")
    A("v_and_b32 v0, 63, v0")
    A(f"v_readfirstlane_b32 s{SW}, v4")
    A(f"v_and_b32 v{VC}, 15, v0")
    A(f"v_lshrrev_b32 v{VG}, 4, v0")
    A(f"s_and_b32 s{SJ}, s2, 7")
    A(f"s_lshr_b32 s{SI}, s2, 3")
    A(f"s_mov_b32 s{SFF}, 0xff")
    A(f"s_mov_b32 s{SLO}, 0x05040100")
    A(f"s_mov_b32 s{SHI}, 0x07060302")
    A(f"s_mov_b32 s{SHM}, 0xffff0000")
    A.stamps_init()
    if p.prio:
        A("s_setprio 3")
    A("s_waitcnt lgkmcnt(0)")
    A(f"s_load_dword s{SEP}, s[{S_WSP}:{S_WSP+1}], 0")
    A.srd(WS, S_WSP, 0x10000000)
    A(f"s_cmp_ge_u32 s{SW}, 8")
    A("s_cbranch_scc1 L_G")
    A(f"s_cmp_ge_u32 s{SW}, 4")
    A("s_cbranch_scc1 L_A")
    role_C(A)
    role_A(A)
    role_G(A)
    A.label("L_fin")
    A.stamps_out()
    A.label("L_end")
    A("s_endpgm")
    kernel_desc(A, KN, 128, 102)
    return A.text()


def variant(name, **kw):
    p = P()
    for k, v in kw.items():
        assert hasattr(p, k), k
        setattr(p, k, v)
    open(name + ".s", "w").write(build(p))
    p.diag = True
    open(name + "_d.s", "w").write(build(p))


if __name__ == "__main__":
    variant("p1")
    variant("p1g", dbg=True)
    variant("pc", prio=True, WIN_A=10, WIN_G=8, WIN_C=16)
    variant("pf", prio=True, WIN_A=10, WIN_G=8, WIN_C=16, psleep=20)
    variant("pg", prio=True, WIN_A=10, WIN_G=8, WIN_C=16, lsleep=2)
    variant("ph", prio=True, WIN_A=10, WIN_G=8, WIN_C=16, lsleep=2, psleep=8)
```

```python
import sys
from asmgen import *
import gen_p1 as G1
from gen_p1 import (Gen, R0, R1, R2, LOG2E, S_X, S_K, S_V, S_WQ, S_WO, S_WG, S_WU, S_WD, S_C, S_WM, S_OUT, S_DBG, S_WSP,
                    WS, D1, D2, D3, SJ, SI, SW, STAG, SFF, SLO, SHI, SHM, T0, T1, T2, T3, T4, T5, T6, T7, SEP, SCNT, SB_,
                    SPG, STAMP0, VL, VC, VG, VTAG, EX_V, set_exec64, ln_finish, GOFF, WS_TS)

WS_FLAG = 0x008000
WS_H = 0x010000
WS_X1 = 0x020000
WS_SB = 0x030000
WS_CB = 0x038000
WS_Q = 0x040000
WS_O = 0x080000
WS_ACT = 0x0A0000
WS_H2 = 0x0C0000
WS_OPD = 0x100000
WS_OPM = 0x200000
WS_MP = 0x300000
WS_XP = 0x600000
WS_YP = 0x700000

L_CNT = 0
(C_ST, E_M0, E_H, E_Q, C_A, E_O, C_G, C_MK, C_WQ, E_QP, E_M, C_WO, E_WO, E_X1, E_GB, C_WD, E_WD, E_FL,
 C_MX, C_L, E_W1, E_W2, E_W3, E_MS) = [4 * k for k in range(24)]
L_STAT = 256
L_AST = 512
L_MS = 1024
L_ST2 = 2048
L_QF = 2048
TS = 544
SLAB = 8 * TS
L_RED = 6144
L_B = L_RED
L_A = L_RED + 8 * SLAB
LDS_BYTES = L_A + 8 * SLAB
G1.L_STAT = L_STAT
assert G1.L_CNT == 0 and G1.C_ST == C_ST

SR, SR32, SPA = 98, 99, 100


class P:
    NLOCAL = 200
    LIMIT = 200000
    LLIMIT = 4000000
    diag = False
    local = True
    prefetch = True
    prio = False
    psleep = 0
    lsleep = 0
    dbg = False
    WQ0 = 2
    WIN_Q = None
    WIN_KV = None
    FLAGPOS = 10
    FLAGW = 7
    TRIG_Q = 2
    WIN_M = None
    PRE_H = False
    PRE_O = False
    PRE_ACT = False
    PLIM = 20000
    MTRIG = "wq"
    GLATE = False
    KFL = "nt"
    GFL = "nt"
    GSTAMP = False
    VSTAMP = False


def prepoll(A, soff_reg, offs=(0,), lim=None):
    lim = lim or A.p.PLIM
    lab, done = A.newlabel("LS"), A.newlabel("LSD")
    A(f"s_add_u32 s{SPA}, s{S_WSP}, s{soff_reg}")
    A(f"s_addc_u32 s{SPA+1}, s{S_WSP+1}, 0")
    A(f"s_mov_b32 s{SCNT}, 0")
    A.label(lab)
    regs = (T6, T7)
    for k, o in enumerate(offs):
        A(f"s_load_dword s{regs[k]}, s[{SPA}:{SPA+1}], {o} glc")
    A(f"s_add_u32 s{SCNT}, s{SCNT}, 1")
    A(f"s_cmp_gt_u32 s{SCNT}, {lim}")
    A(f"s_cbranch_scc1 {done}")
    A("s_waitcnt lgkmcnt(0)")
    A(f"s_xor_b32 s{T6}, s{T6}, s{STAG}")
    if len(offs) > 1:
        A(f"s_xor_b32 s{T7}, s{T7}, s{STAG}")
        A(f"s_or_b32 s{T6}, s{T6}, s{T7}")
    A(f"s_and_b32 s{T6}, s{T6}, 0xff")
    A(f"s_cbranch_scc1 {lab}")
    A.label(done)
    A("s_waitcnt lgkmcnt(0)")


def m_setup(A, s_chunk, s_m, s_sel, s_half):
    A(f"s_mul_i32 s67, s{SR}, {64*12288}")
    A(f"s_lshl_b32 s{T4}, s{SJ}, 8")
    A(f"s_add_u32 s67, s67, s{T4}")
    A(f"s_lshl_b32 s{T4}, s{s_half}, 7")
    A(f"s_add_u32 s67, s67, s{T4}")
    A(f"s_lshl_b32 s{T4}, s{s_chunk}, 11")
    A(f"s_add_u32 s67, s67, s{T4}")


def m_bases(A, s_m, s_sel, s_half):
    A(f"s_lshl_b32 s68, s{s_m}, 20")
    A(f"s_lshl_b32 s{T4}, s{SJ}, 17")
    A(f"s_add_u32 s68, s68, s{T4}")
    A(f"s_add_u32 s68, s68, {WS_MP}")
    A(f"s_lshl_b32 s{T4}, s{s_half}, 16")
    A(f"s_add_u32 s68, s68, s{T4}")
    A(f"s_lshl_b32 s{T4}, s{s_sel}, 11")
    A(f"s_add_u32 s68, s68, s{T4}")
    A(f"s_lshl_b32 s{T4}, s{SR}, 7")
    A(f"s_add_u32 s68, s68, s{T4}")


def m_vregs(A):
    A(f"v_lshlrev_b32 v26, 4, v{VL}")
    A(f"v_lshrrev_b32 v4, 3, v{VC}")
    A(f"v_lshrrev_b32 v5, 1, v{VG}")
    A(f"v_lshl_add_u32 v4, v5, 1, v4")
    A(f"v_and_b32 v5, 1, v{VG}")
    A(f"v_lshl_add_u32 v4, v4, 2, v5")
    A(f"v_lshlrev_b32 v24, 12, v4")
    A(f"v_and_b32 v4, 7, v{VC}")
    A(f"v_lshl_add_u32 v24, v4, 4, v24")
    A(f"v_add_u32 v25, 0x2000, v24")


def c_load(A):
    A.srd(D2, S_C, 16384)
    A.afrag_voff(6, 2048, 2, 5)
    A(f"s_lshl_b32 s{T4}, s{SR}, 7")
    A(f"buffer_load_dwordx4 v[8:11], v6, s[{D2}:{D2+3}], s{T4} offen")


def c_silu(A):
    for d in range(4):
        A(f"v_lshlrev_b32 v{12+2*d}, 16, v{8+d}")
        A(f"v_and_b32 v{13+2*d}, 0xffff0000, v{8+d}")
    for q in range(8):
        A.silu(12 + q, 4 + (q & 1))
    for q in range(4):
        A(f"v_cvt_pk_bf16_f32 v{28+q}, v{12+2*q}, v{13+2*q}")


def perm_prog(A, src, dst, after=0):
    for q in range(4):
        A(f"s_waitcnt vmcnt({after + 6 - 2*q})")
        for d in range(4):
            a = src + 4 * (2 * q) + d
            b = src + 4 * (2 * q + 1) + d
            A(f"v_perm_b32 v{dst+4*(2*d)+q}, v{b}, v{a}, s{SLO}")
            A(f"v_perm_b32 v{dst+4*(2*d+1)+q}, v{b}, v{a}, s{SHI}")


def m_fin(A):
    acc = R2
    A.mfma(acc, 28, R0, True)
    A.diag_add(acc)
    A.tagf(range(acc, acc + 8))
    A.pub(acc, 24, 68, 0, local=True)
    A.pub(acc + 4, 25, 68, 0, local=True)


def m_fin_g(A):
    acc = R2
    A.pub_g(acc, 24, 68, 0)
    A.pub_g(acc + 4, 25, 68, 0)


def mp_gather(A, m, us):
    A(f"s_lshl_b32 s{T3}, s{SJ}, 17")
    A(f"s_lshl_b32 s{T1}, s{SR32}, 12")
    A(f"s_add_u32 s{T3}, s{T3}, {WS_MP + (m << 20)}")
    A(f"s_add_u32 s{T3}, s{T3}, s{T1}")
    A(f"v_lshlrev_b32 v6, 4, v{VL}")
    lds = [(R0 + 4 * k, 6, 1024 * u, None) for k, u in enumerate(us)]
    A.poll(lds, T3, local=True, acc=4)


def dp_voff(A, vd, rs, t0, piece_mask=7):
    A(f"v_lshrrev_b32 v{t0}, 3, v{VC}")
    A(f"v_lshl_add_u32 v{t0}, v{t0}, 2, v{VG}")
    A(f"s_mov_b32 s{T6}, {rs}")
    A(f"v_mul_lo_u32 v{t0}, v{t0}, s{T6}")
    A(f"v_and_b32 v{vd}, {piece_mask}, v{VC}")
    A(f"v_lshl_add_u32 v{vd}, v{vd}, 4, v{t0}")


def hx_voff(A, vd, t0):
    A(f"v_lshrrev_b32 v{t0}, 3, v{VC}")
    A(f"v_lshl_add_u32 v{t0}, v{t0}, 2, v{VG}")
    A(f"v_lshlrev_b32 v{t0}, 8, v{t0}")
    A(f"v_and_b32 v{vd}, 3, v{VC}")
    A(f"v_lshl_add_u32 v{vd}, v{vd}, 4, v{t0}")
    A(f"v_bfe_u32 v{t0}, v{VC}, 2, 1")
    A(f"v_lshl_add_u32 v{vd}, v{t0}, 7, v{vd}")


def slab_write(A, acc, lbase, s_idx, va=6):
    A(f"s_mul_i32 s{T0}, s{s_idx}, {SLAB}")
    A(f"v_lshlrev_b32 v{va}, 4, v{VL}")
    A(f"v_add_u32 v{va}, s{T0}, v{va}")


def slab_store(A, acc, lbase, va=6):
    A("s_mov_b32 exec_hi, 0")
    for t in range(8):
        A(f"ds_write_b128 v{va}, v[{acc+4*t}:{acc+4*t+3}] offset:{lbase + TS*t}")
    A("s_mov_b32 exec_hi, -1")


def t128_prep(A, lbase, dst_region, va=22, vr=23, vs=24):
    slab_write(A, None, lbase, SW, va)
    A(f"v_lshrrev_b32 v4, 5, v{VL}")
    A(f"s_mov_b32 s{T0}, {4*SLAB}")
    A(f"v_mul_lo_u32 v{vr}, v4, s{T0}")
    A(f"v_and_b32 v4, 31, v{VL}")
    A(f"v_lshl_add_u32 v{vr}, v4, 4, v{vr}")
    A(f"s_mul_i32 s{T0}, s{SW}, {TS}")
    A(f"v_add_u32 v{vr}, s{T0}, v{vr}")
    A(f"v_lshrrev_b32 v4, 3, v{VC}")
    A(f"v_lshlrev_b32 v{vs}, 16, v4")
    A(f"v_and_b32 v4, 1, v{VG}")
    A(f"v_lshl_add_u32 v{vs}, v4, 12, v{vs}")
    A(f"v_and_b32 v4, 7, v{VC}")
    A(f"v_lshl_add_u32 v{vs}, v4, 4, v{vs}")
    A(f"s_lshl_b32 s69, s{SJ}, 17")
    A(f"s_lshl_b32 s{T0}, s{SW}, 13")
    A(f"s_add_u32 s69, s69, s{T0}")
    A(f"s_lshl_b32 s{T0}, s{SR}, 7")
    A(f"s_add_u32 s69, s69, s{T0}")
    A(f"s_add_u32 s69, s69, {dst_region}")


def half_sum_pub(A, r, voff, sbase):
    A(f"v_permlane32_swap_b32 v{r}, v{r+2}")
    A(f"v_permlane32_swap_b32 v{r+1}, v{r+3}")
    A(f"v_add_f32 v{r}, v{r}, v{r+2}")
    A(f"v_add_f32 v{r+1}, v{r+1}, v{r+3}")
    A.tagf((r, r + 1))
    A(f"v_mov_b32 v{r+2}, v{r}")
    A(f"v_mov_b32 v{r+3}, v{r+1}")
    A(f"v_permlane32_swap_b32 v{r}, v{r+2}")
    A(f"v_permlane32_swap_b32 v{r+1}, v{r+3}")
    A("s_mov_b32 exec_hi, 0")
    A.pub(r, voff, sbase, 0, local=True)
    A.pub_g(r, voff, sbase, 0)
    A("s_mov_b32 exec_hi, -1")


def pub2(A, r, voff, sbase):
    if A.p.local:
        A(f"buffer_store_dwordx2 v[{r}:{r+1}], v{voff}, s[{WS}:{WS+3}], s{sbase} offen")
    A(f"s_add_u32 s{T6}, s{sbase}, {GOFF}")
    A(f"buffer_store_dwordx2 v[{r}:{r+1}], v{voff}, s[{WS}:{WS+3}], s{T6} offen sc1")


def t128_fin(A, cnt, lbase, vr=23, vs=24):
    A.signal(cnt)
    A.wait_cnt(cnt, 8)
    B = 8
    for s in range(4):
        A(f"ds_read_b128 v[{R0+4*s}:{R0+4*s+3}], v{vr} offset:{lbase + SLAB*s}")
    A("s_waitcnt lgkmcnt(2)")
    for q in range(4):
        A(f"v_add_f32 v{R0+q}, v{R0+q}, v{R0+4+q}")
    A("s_waitcnt lgkmcnt(0)")
    for q in range(4):
        A(f"v_add_f32 v{R0+8+q}, v{R0+8+q}, v{R0+12+q}")
    for q in range(4):
        A(f"v_add_f32 v{R0+q}, v{R0+q}, v{R0+8+q}")
    half_sum_pub(A, R0, vs, 69)


def red_addr(A, va, vr, nsrc4):
    A(f"v_and_b32 v{va}, 7, v{VC}")
    A(f"v_lshlrev_b32 v{va}, 5, v{va}")
    A(f"v_lshrrev_b32 v5, 3, v{VC}")
    A(f"v_lshl_add_u32 v{va}, v5, 3, v{va}")
    A(f"v_lshrrev_b32 v5, 1, v{VG}")
    A(f"v_lshl_add_u32 v{va}, v5, 4, v{va}")
    A(f"v_and_b32 v5, 1, v{VG}")
    A(f"v_lshl_add_u32 v{va}, v5, 10, v{va}")
    A(f"s_lshl_b32 s{T1}, s{SW}, 11")
    A(f"v_add_u32 v{va}, s{T1}, v{va}")
    A(f"v_lshlrev_b32 v{vr}, {11 + (nsrc4.bit_length()-1)}, v{VG}")
    A(f"v_lshl_add_u32 v{vr}, v{VC}, 4, v{vr}")
    A(f"s_lshl_b32 s{T1}, s{SW}, 8")
    A(f"v_add_u32 v{vr}, s{T1}, v{vr}")


def red_store(A, va, cnt):
    for t in range(2):
        for r in range(4):
            A(f"ds_write_b32 v{va}, v{R2+4*t+r} offset:{L_RED + 256*r + 4*t}")
    A.signal(cnt)


def red_fin(A, vr, nsrc4):
    for s in range(nsrc4):
        A(f"ds_read_b128 v[{R0+4*s}:{R0+4*s+3}], v{vr} offset:{L_RED + 2048*s}")
    if nsrc4 == 4:
        A("s_waitcnt lgkmcnt(2)")
        for q in range(4):
            A(f"v_add_f32 v{R0+q}, v{R0+q}, v{R0+4+q}")
        A("s_waitcnt lgkmcnt(0)")
        for q in range(4):
            A(f"v_add_f32 v{R0+8+q}, v{R0+8+q}, v{R0+12+q}")
        for q in range(4):
            A(f"v_add_f32 v{R0+q}, v{R0+q}, v{R0+8+q}")
    else:
        A("s_waitcnt lgkmcnt(0)")
        for q in range(4):
            A(f"v_add_f32 v{R0+q}, v{R0+q}, v{R0+4+q}")
    A(f"v_permlane32_swap_b32 v{R0}, v{R0+2}")
    A(f"v_permlane32_swap_b32 v{R0+1}, v{R0+3}")
    A(f"v_add_f32 v{R0}, v{R0}, v{R0+2}")
    A(f"v_add_f32 v{R0+1}, v{R0+1}, v{R0+3}")
    A(f"v_permlane16_swap_b32 v{R0}, v{R0+1}")
    A(f"v_add_f32 v{R0}, v{R0}, v{R0+1}")


def regather(A, x):
    A(f"v_mov_b32 v{x+1}, v{x}")
    A(f"v_permlane16_swap_b32 v{x}, v{x+1}")
    A(f"v_mov_b32 v{x+2}, v{x}")
    A(f"v_mov_b32 v{x+3}, v{x+1}")
    A(f"v_permlane32_swap_b32 v{x}, v{x+2}")
    A(f"v_permlane32_swap_b32 v{x+1}, v{x+3}")


def red_elem_prep(A, srd, vx=23, va=22, vp=26):
    A(f"v_lshlrev_b32 v{va}, 11, v{VG}")
    A(f"v_and_b32 v4, 7, v{VL}")
    A(f"v_lshl_add_u32 v{va}, v4, 4, v{va}")
    A(f"s_and_b32 s67, s{SR32}, 1")
    A(f"s_lshl_b32 s67, s67, 13")
    A(f"s_lshl_b32 s{T1}, s{SJ}, 8")
    A(f"s_add_u32 s67, s67, s{T1}")
    A(f"s_lshr_b32 s{T1}, s{SR32}, 4")
    A(f"s_lshl_b32 s{T1}, s{T1}, 7")
    A(f"s_add_u32 s67, s67, s{T1}")
    A(f"s_and_b32 s{T1}, s{SR32}, 14")
    A(f"s_add_u32 s67, s67, s{T1}")
    A(f"buffer_load_ushort v{vx}, v{va}, s[{srd}:{srd+3}], s67 offen")
    A(f"v_bfe_u32 v4, v{VL}, 2, 1")
    A(f"v_lshlrev_b32 v{vp}, 6, v4")
    A(f"v_lshl_add_u32 v{vp}, v{VG}, 4, v{vp}")
    A(f"s_lshl_b32 s{T4}, s{SJ}, 5")
    A(f"s_add_u32 s{T4}, s{T4}, s{SR32}")
    A(f"s_lshl_b32 s{T4}, s{T4}, 7")


def prefetch_code(A):
    A("s_getpc_b64 s[44:45]")
    lab = A.newlabel("L_pc")
    A.raw(lab + ":")
    A(f"s_sub_u32 s44, s44, {lab}-L_start")
    A("s_subb_u32 s45, s45, 0")
    A("s_mov_b32 s46, L_end-L_start")
    A("s_mov_b32 s47, 0x20000")
    A(f"v_lshlrev_b32 v4, 4, v{VL}")
    A(f"s_and_b32 s{T0}, s{SI}, 3")
    A(f"s_lshl_b32 s{T0}, s{T0}, 10")
    for k in range(12):
        A(f"s_add_u32 s{T1}, s{T0}, {4096*k}")
        A(f"buffer_load_dwordx4 v[28:31], v4, s[44:47], s{T1} offen")


def zero_cnt(A):
    A(f"v_lshlrev_b32 v4, 2, v{VL}")
    A("v_mov_b32 v5, 0")
    A(f"ds_write_b32 v4, v5 offset:{L_CNT}")


def role_EM(A):
    A.label("L_EM")
    A.srd(D1, S_WM, 12582912)
    A(f"s_lshr_b32 s{T0}, s{SW}, 1")
    A(f"s_and_b32 s{T1}, s{SW}, 1")
    m_setup(A, T0, None, T0, T1)
    A.d64_voff(7, 12288, 5)
    c_load(A)
    A.loads(A.tile_loads(D1, 7, 67, 12288, R1), None)
    A(f"s_mov_b32 s{T2}, 0")
    m_bases(A, T2, T0, T1)
    m_vregs(A)
    A.init_sync()
    A("s_waitcnt vmcnt(8)")
    c_silu(A)
    perm_prog(A, R1, R0)
    A.stamp(1)
    m_fin(A)
    A.signal(E_M0)
    A.stamp(2)
    if A.p.GLATE:
        A.wait_cnt(E_H, 2)
    m_fin_g(A)
    A("s_branch L_E2")


def role_ES(A):
    p = A.p
    A.label("L_ES")
    A.srd(D1, S_X, 16384)
    A(f"s_sub_u32 s{T0}, s{SW}, 4")
    A(f"s_lshl_b32 s{T1}, s{T0}, 12")
    A(f"v_lshlrev_b32 v4, 6, v{VL}")
    for k in range(4):
        A(f"buffer_load_dwordx4 v[{8+4*k}:{11+4*k}], v4, s[{D1}:{D1+3}], s{T1} offen offset:{16*k}")
    A(f"s_lshl_b32 s{SR32}, s{SR}, 1")
    A(f"s_add_u32 s{SR32}, s{SR32}, s{T0}")
    A(f"s_cmp_ge_u32 s{SW}, 6")
    A("s_cbranch_scc1 L_ES67")
    red_elem_prep(A, D1, vx=28, va=27, vp=26)
    A(f"s_add_u32 s{T4}, s{T4}, {WS_H}")
    A.init_sync()
    A("s_waitcnt vmcnt(1)")
    G1.ln_stats_x(A)
    A(f"s_and_b32 s{T1}, s{SR32}, 1")
    A(f"s_lshl_b32 s{T1}, s{T1}, 5")
    A(f"v_lshlrev_b32 v25, 3, v{VG}")
    A(f"v_add_u32 v25, s{T1}, v25")
    A.wait_cnt(C_ST, 4)
    A(f"ds_read_b64 v[30:31], v25 offset:{L_STAT}")
    A("s_waitcnt vmcnt(0) lgkmcnt(0)")
    A("v_lshlrev_b32 v23, 16, v28")
    A("v_sub_f32 v23, v23, v30")
    A.rnd(23)
    A("v_mul_f32 v23, v23, v31")
    A.rnd(23)
    A.wait_cnt(E_M0, 4)
    A.stamp(1)
    mp_gather(A, 0, (0, 1, 2, 3))
    A.stamp(2)
    for q in range(4):
        A(f"v_add_f32 v{R0+q}, v{R0+q}, v{R0+4+q}")
        A(f"v_add_f32 v{R0+8+q}, v{R0+8+q}, v{R0+12+q}")
    A.packed_red2(R0, R0 + 8)
    A.rnd2(R0, R0 + 2, 4)
    A(f"v_add_f32 v{R0+2}, 1.0, v{R0+2}")
    A.rnd(R0 + 2)
    A(f"v_mul_f32 v23, v23, v{R0+2}")
    A.rnd(23)
    A(f"v_add_f32 v23, v23, v{R0}")
    A.rnd_tag(23)
    A.quad_gather(23, 8)
    set_exec64(A, EX_V)
    A.pub(8, 26, T4)
    A("s_mov_b64 exec, -1")
    A.signal(E_H)
    A.stamp(3)
    A("s_branch L_ESq")
    A.label("L_ES67")
    A(f"s_cmp_eq_u32 s{SW}, 7")
    A("s_cbranch_scc1 L_ES7")
    zero_cnt(A)
    A.init_sync()
    A("s_waitcnt vmcnt(0)")
    A("s_branch L_ES67b")
    A.label("L_ES7")
    if p.prefetch:
        prefetch_code(A)
    A.init_sync()
    A(f"s_waitcnt vmcnt({12 if p.prefetch else 0})")
    A.label("L_ES67b")
    G1.ln_stats_x(A)
    A.label("L_ESq")
    A(f"v_and_b32 v6, 7, v{VC}")
    A("v_lshlrev_b32 v6, 9, v6")
    A(f"v_lshl_add_u32 v6, v{VG}, 5, v6")
    A(f"s_lshl_b32 s{T3}, s{SJ}, 14")
    A(f"s_lshr_b32 s{T1}, s{SR}, 2")
    A(f"s_lshl_b32 s{T1}, s{T1}, 12")
    A(f"s_add_u32 s{T3}, s{T3}, s{T1}")
    A(f"s_add_u32 s{T3}, s{T3}, {WS_Q}")
    A(f"s_sub_u32 s{T0}, s{SW}, 4")
    A(f"s_lshl_b32 s{T1}, s{T0}, 7")
    A(f"s_add_u32 s{T3}, s{T3}, s{T1}")
    A(f"v_lshlrev_b32 v7, 4, v{VL}")
    A(f"s_lshl_b32 s{T1}, s{T0}, 10")
    A(f"v_add_u32 v24, s{T1}, v7")
    A(f"s_cmp_lg_u32 s{SW}, 6")
    A("s_cbranch_scc1 L_ESqw")
    A.wait_cnt(E_H, 2)
    prepoll(A, T3, (0, 131072 + 7 * 512))
    A.signal(E_W1)
    A.label("L_ESqw")
    A.wait_cnt(E_W1, 1)
    A.poll([(8, 6, 0, None), (12, 6, 16, None), (16, 6, 0, 131072), (20, 6, 16, 131072)], T3)
    A.stamp(4)
    for q in range(8):
        A(f"v_add_f32 v{8+q}, v{8+q}, v{16+q}")
    for q in range(4):
        A(f"v_cvt_pk_bf16_f32 v{16+q}, v{8+2*q}, v{9+2*q}")
    A(f"ds_write_b128 v24, v[16:19] offset:{L_QF}")
    A.signal(E_Q)
    A(f"s_cmp_ge_u32 s{SW}, 6")
    A("s_cbranch_scc1 L_ESst")
    A(f"v_lshlrev_b32 v6, 4, v{VL}")
    A(f"v_lshrrev_b32 v7, 5, v{VL}")
    A("v_lshlrev_b32 v7, 5, v7")
    A(f"s_lshl_b32 s{T3}, s{SJ}, 5")
    A(f"s_add_u32 s{T3}, s{T3}, s{SR32}")
    A(f"s_lshl_b32 s{T4}, s{T3}, 9")
    A(f"s_add_u32 s{T4}, s{T4}, {WS_O}")
    A(f"s_lshr_b32 s{T2}, s{T3}, 2")
    A(f"s_lshl_b32 s{T2}, s{T2}, 7")
    A(f"s_lshl_b32 s{T3}, s{T3}, 11")
    A(f"s_sub_u32 s{T2}, s{T2}, s{T3}")
    A(f"s_add_u32 s{T2}, s{T2}, {WS_OPM - WS_OPD}")
    A(f"s_add_u32 s{T3}, s{T3}, {WS_OPD}")
    A(f"v_add_u32 v7, s{T2}, v7")
    M0_, L0_, M1_, L1_, D0_, D1_ = 8, 12, 16, 20, R0, R0 + 4
    A.wait_cnt(C_A, 8)
    A.poll([(M0_, 7, 0, None), (M1_, 7, 64, None), (L0_, 7, 16, None), (L1_, 7, 80, None),
            (D0_, 6, 0, None), (D1_, 6, 1024, None)], T3, local=True)
    A.stamp(5)
    X = R0 + 8
    for q in range(4):
        A(f"v_max_f32 v{X+q}, v{M0_+q}, v{M1_+q}")
    for q in range(4):
        A.bfly(X + q, X + 4 + q, "v_max_f32", bits=(5,))
    for m in (M0_, M1_):
        for q in range(4):
            A(f"v_sub_f32 v{m+q}, v{m+q}, v{X+q}")
            A(f"v_mul_f32 v{m+q}, {LOG2E:#x}, v{m+q}")
            A(f"v_exp_f32 v{m+q}, v{m+q}")
    for q in range(4):
        A(f"v_mul_f32 v{L0_+q}, v{L0_+q}, v{M0_+q}")
        A(f"v_mul_f32 v{D0_+q}, v{D0_+q}, v{M0_+q}")
    for q in range(4):
        A(f"v_fmac_f32 v{L0_+q}, v{L1_+q}, v{M1_+q}")
        A(f"v_fmac_f32 v{D0_+q}, v{D1_+q}, v{M1_+q}")
    for z in (L0_, D0_):
        A(f"v_permlane32_swap_b32 v{z}, v{z+2}")
        A(f"v_permlane32_swap_b32 v{z+1}, v{z+3}")
    for z in (L0_, D0_):
        A(f"v_add_f32 v{z}, v{z}, v{z+2}")
        A(f"v_add_f32 v{z+1}, v{z+1}, v{z+3}")
    A(f"v_rcp_f32 v{L0_}, v{L0_}")
    A(f"v_rcp_f32 v{L0_+1}, v{L0_+1}")
    for q in range(2):
        A(f"v_mul_f32 v{D0_+q}, v{D0_+q}, v{L0_+q}")
        A.rnd_tag(D0_ + q)
    A(f"v_mov_b32 v{D0_+2}, v{D0_}")
    A(f"v_mov_b32 v{D0_+3}, v{D0_+1}")
    A(f"v_permlane32_swap_b32 v{D0_}, v{D0_+2}")
    A(f"v_permlane32_swap_b32 v{D0_+1}, v{D0_+3}")
    A("s_mov_b32 exec_hi, 0")
    A.pub(D0_, 6, T4)
    A("s_mov_b32 exec_hi, -1")
    A.signal(E_O)
    A.stamp(6)
    A("s_branch L_E2")
    A.label("L_ESst")
    A(f"s_cmp_eq_u32 s{SW}, 7")
    A("s_cbranch_scc1 L_E2")
    A(f"v_and_b32 v7, 7, v{VL}")
    A("v_lshlrev_b32 v6, 5, v7")
    A(f"s_lshl_b32 s{T4}, s{SJ}, 2")
    A(f"s_lshr_b32 s{T1}, s{SR}, 2")
    A(f"s_add_u32 s{T4}, s{T4}, s{T1}")
    A(f"s_lshl_b32 s{T4}, s{T4}, 8")
    A(f"s_and_b32 s{T1}, s{SR}, 3")
    A(f"s_lshl_b32 s{T1}, s{T1}, 5")
    A(f"s_add_u32 s{T4}, s{T4}, s{T1}")
    A(f"s_add_u32 s{T4}, s{T4}, {WS_OPM}")
    A(f"s_add_u32 s{T3}, s{T4}, {GOFF}")
    A("v_lshrrev_b32 v24, 2, v7")
    A("v_lshlrev_b32 v24, 7, v24")
    A("v_and_b32 v7, 3, v7")
    A("v_lshl_add_u32 v24, v7, 2, v24")
    A.wait_cnt(C_L, 8)
    A(f"ds_read_b128 v[8:11], v6 offset:{L_AST}")
    A(f"ds_read_b128 v[12:15], v6 offset:{L_AST+16}")
    A(f"ds_read_b128 v[16:19], v6 offset:{L_AST+256}")
    A(f"ds_read_b128 v[20:23], v6 offset:{L_AST+272}")
    A("s_waitcnt lgkmcnt(2)")
    A("v_max3_f32 v8, v8, v9, v10")
    A("v_max3_f32 v11, v11, v12, v13")
    A("v_max3_f32 v8, v8, v14, v15")
    A("v_max_f32 v8, v8, v11")
    A("s_waitcnt lgkmcnt(0)")
    for q in range(4):
        A(f"v_add_f32 v{16+q}, v{16+q}, v{20+q}")
    A("v_add_f32 v16, v16, v17")
    A("v_add_f32 v18, v18, v19")
    A("v_add_f32 v9, v16, v18")
    A.tagf((8, 9))
    A("s_mov_b64 exec, 0xff")
    if p.local:
        A(f"buffer_store_dword v8, v24, s[{WS}:{WS+3}], s{T4} offen")
        A(f"buffer_store_dword v9, v24, s[{WS}:{WS+3}], s{T4} offen offset:16")
    A(f"buffer_store_dword v8, v24, s[{WS}:{WS+3}], s{T3} offen sc1")
    A(f"buffer_store_dword v9, v24, s[{WS}:{WS+3}], s{T3} offen offset:16 sc1")
    A("s_mov_b64 exec, -1")
    A.stamp(5)
    A("s_branch L_E2")


def role_EA(A):
    p = A.p
    A.label("L_EA")
    A.srd(D2, S_K, 33554432)
    A.srd(D3, S_V, 33554432)
    A(f"s_sub_u32 s69, s{SW}, 8")
    A(f"s_lshl_b32 s67, s{SJ}, 2")
    A(f"s_lshr_b32 s{T1}, s{SR}, 2")
    A(f"s_add_u32 s67, s67, s{T1}")
    A(f"s_lshl_b32 s67, s67, 12")
    A(f"s_and_b32 s{T1}, s{SR}, 3")
    A(f"s_lshl_b32 s{T1}, s{T1}, 8")
    A(f"s_add_u32 s67, s67, s{T1}")
    A(f"s_lshl_b32 s{T1}, s69, 5")
    A(f"s_add_u32 s67, s67, s{T1}")
    A(f"s_add_u32 s67, s67, 3072")
    A(f"s_lshl_b32 s67, s67, 8")
    A(f"s_add_u32 s68, s67, 4096")
    A(f"v_lshlrev_b32 v24, 8, v{VC}")
    A(f"v_lshl_add_u32 v24, v{VG}, 4, v24")
    A(f"v_lshlrev_b32 v25, 10, v{VG}")
    A(f"v_lshl_add_u32 v25, v{VC}, 4, v25")
    kv = []
    for kb in range(2):
        for u in range(4):
            kv.append(f"buffer_load_dwordx4 v[{R0+16*kb+4*u}:{R0+16*kb+4*u+3}], v24, s[{D2}:{D2+3}], s{67+kb} offen offset:{64*u} {p.KFL}")
    kv += A.tile_loads(D3, 25, 67, 256, R2, rows=[0, 1, 2, 3, 16, 17, 18, 19])
    A(f"s_lshl_b32 s{T5}, s2, 6")
    A(f"s_add_u32 s{T5}, s{T5}, {WS_FLAG}")
    A("v_mov_b32 v23, 0")
    A.init_sync()
    A.wait_cnt(E_H, 2)
    A.stamp(1)
    FP = p.FLAGPOS
    assert FP >= 8
    out = A.loads(kv[:FP], p.WIN_KV)
    A(f"s_cmp_lg_u32 s69, {p.FLAGW}")
    A("s_cbranch_scc1 L_EA_nf")
    A("s_mov_b64 exec, 1")
    A(f"buffer_store_dword v{VTAG}, v23, s[{WS}:{WS+3}], s{T5} offen sc1")
    A("s_mov_b64 exec, -1")
    A.label("L_EA_nf")
    A.loads(kv[FP:], p.WIN_KV, already=out)
    slab_write(A, None, L_A, 69, 22)
    A(f"s_lshl_b32 s{T1}, s69, 2")
    A(f"v_and_b32 v23, 7, v{VC}")
    A(f"v_lshlrev_b32 v21, 5, v23")
    A(f"v_add_u32 v23, s{T1}, v21")
    A(f"v_lshrrev_b32 v4, 5, v{VL}")
    A(f"s_mov_b32 s{T0}, {4*SLAB}")
    A(f"v_mul_lo_u32 v20, v4, s{T0}")
    A(f"v_and_b32 v5, 7, v{VL}")
    A(f"s_mov_b32 s{T0}, {TS}")
    A(f"v_mul_lo_u32 v5, v5, s{T0}")
    A("v_add_u32 v20, v20, v5")
    A(f"v_bfe_u32 v5, v{VL}, 3, 2")
    A("v_lshl_add_u32 v20, v5, 4, v20")
    A(f"s_lshl_b32 s{T0}, s69, 6")
    A(f"v_add_u32 v20, s{T0}, v20")
    A(f"v_and_b32 v5, 31, v{VL}")
    A("v_lshlrev_b32 v19, 4, v5")
    A(f"s_lshl_b32 s{T3}, s{SJ}, 2")
    A(f"s_lshr_b32 s{T1}, s{SR}, 2")
    A(f"s_add_u32 s{T3}, s{T3}, s{T1}")
    A(f"s_lshl_b32 s{T3}, s{T3}, 3")
    A(f"s_add_u32 s{T3}, s{T3}, s69")
    A(f"s_lshl_b32 s{T3}, s{T3}, 2")
    A(f"s_and_b32 s{T1}, s{SR}, 3")
    A(f"s_add_u32 s{T3}, s{T3}, s{T1}")
    A(f"s_lshl_b32 s{T3}, s{T3}, 9")
    A(f"s_add_u32 s{T3}, s{T3}, {WS_OPD}")
    A(f"v_lshlrev_b32 v7, 4, v{VL}")
    if p.diag:
        A(f"s_waitcnt vmcnt({0 if p.VSTAMP else 8})")
        A.stamp(5)
    A.wait_cnt(E_Q, 4)
    QF = R1
    for u in range(4):
        A(f"ds_read_b128 v[{QF+4*u}:{QF+4*u+3}], v7 offset:{L_QF+1024*u}")
    A("s_waitcnt vmcnt(8) lgkmcnt(0)")
    A.stamp(2)
    S = 24
    for kb in range(2):
        for u in range(4):
            c = "0" if u == 0 else f"v[{S+4*kb}:{S+4*kb+3}]"
            A(f"v_mfma_f32_16x16x32_bf16 v[{S+4*kb}:{S+4*kb+3}], v[{R0+16*kb+4*u}:{R0+16*kb+4*u+3}], v[{QF+4*u}:{QF+4*u+3}], {c}")
    for k in range(S, S + 8, 2):
        A.rnd2(k, k + 1, 4)
        A(f"v_mul_f32 v{k}, 0x3db504f3, v{k}")
        A(f"v_mul_f32 v{k+1}, 0x3db504f3, v{k+1}")
        A.rnd2(k, k + 1, 5)
    A(f"v_max3_f32 v6, v{S}, v{S+1}, v{S+2}")
    A(f"v_max3_f32 v7, v{S+3}, v{S+4}, v{S+5}")
    A(f"v_max3_f32 v6, v6, v{S+6}, v{S+7}")
    A("v_max_f32 v6, v6, v7")
    A.bfly(6, 5, "v_max_f32", bits=(4, 5))
    A("s_mov_b64 exec, 0xff")
    A(f"ds_write_b32 v23, v6 offset:{L_AST}")
    A("s_mov_b64 exec, -1")
    A.signal(C_MX)
    for k in range(S, S + 8):
        A(f"v_mul_f32 v{k}, {LOG2E:#x}, v{k}")
    A.wait_cnt(C_MX, 8)
    A(f"ds_read_b128 v[8:11], v21 offset:{L_AST}")
    A(f"ds_read_b128 v[12:15], v21 offset:{L_AST+16}")
    A("s_waitcnt lgkmcnt(0)")
    A("v_max3_f32 v8, v8, v9, v10")
    A("v_max3_f32 v11, v11, v12, v13")
    A("v_max3_f32 v8, v8, v14, v15")
    A("v_max_f32 v6, v8, v11")
    A(f"v_mul_f32 v6, {LOG2E:#x}, v6")
    for k in range(S, S + 8):
        A(f"v_sub_f32 v{k}, v{k}, v6")
        A(f"v_exp_f32 v{k}, v{k}")
    for q in range(4):
        A(f"v_cvt_pk_bf16_f32 v{8+q}, v{S+2*q}, v{S+2*q+1}")
    A(f"v_add_f32 v7, v{S}, v{S+1}")
    A(f"v_add_f32 v6, v{S+2}, v{S+3}")
    for k in range(S + 4, S + 8, 2):
        A(f"v_add_f32 v7, v7, v{k}")
        A(f"v_add_f32 v6, v6, v{k+1}")
    A("v_add_f32 v7, v7, v6")
    A.bfly(7, 5, "v_add_f32", bits=(4, 5))
    A("s_mov_b64 exec, 0xff")
    A(f"ds_write_b32 v23, v7 offset:{L_AST+256}")
    A("s_mov_b64 exec, -1")
    A.signal(C_L)
    perm_prog(A, R2, R1)
    A.stamp(3)
    A.mfma(R0, 8, R1, True)
    slab_store(A, R0, L_A, 22)
    A.signal(C_A)
    A.wait_cnt(C_A, 8)
    O = R2
    for s in range(4):
        A(f"ds_read_b128 v[{O+4*s}:{O+4*s+3}], v20 offset:{L_A+SLAB*s}")
    A("s_waitcnt lgkmcnt(2)")
    for q in range(4):
        A(f"v_add_f32 v{O+q}, v{O+q}, v{O+4+q}")
    A("s_waitcnt lgkmcnt(0)")
    for q in range(4):
        A(f"v_add_f32 v{O+8+q}, v{O+8+q}, v{O+12+q}")
    for q in range(4):
        A(f"v_add_f32 v{O+q}, v{O+q}, v{O+8+q}")
    half_sum_pub(A, O, 19, T3)
    A.stamp(4)


def role_E2(A):
    p = A.p
    A.label("L_E2")
    A(f"s_cmp_ge_u32 s{SR}, 14")
    A("s_cbranch_scc1 L_MK")
    A.srd(D1, S_WG, 7340032)
    A.srd(D2, S_WU, 7340032)
    dp_voff(A, 7, 7168, 5, 3)
    A(f"s_mul_i32 s68, s{SJ}, 14")
    A(f"s_add_u32 s68, s68, s{SR}")
    A(f"s_mul_i32 s{T3}, s{SW}, {64*7168}")
    A(f"s_lshl_b32 s{T1}, s68, 6")
    A(f"s_add_u32 s{T3}, s{T3}, s{T1}")
    A("s_waitcnt vmcnt(0)")
    A.wait_cnt(E_O, 2)
    A.stamp(7)
    for r in range(8):
        dst = R1 + 4 * r
        A(f"s_add_u32 s{T6}, s{T3}, {8*r*7168}")
        A("s_mov_b32 exec_lo, 0x0f0f0f0f\ns_mov_b32 exec_hi, 0x0f0f0f0f")
        A(f"buffer_load_dwordx4 v[{dst}:{dst+3}], v7, s[{D1}:{D1+3}], s{T6} offen {p.GFL}")
        A("s_mov_b32 exec_lo, 0xf0f0f0f0\ns_mov_b32 exec_hi, 0xf0f0f0f0")
        A(f"buffer_load_dwordx4 v[{dst}:{dst+3}], v7, s[{D2}:{D2+3}], s{T6} offen {p.GFL}")
    A("s_mov_b64 exec, -1")
    hx_voff(A, 26, 5)
    red_addr(A, 22, 23, 4)
    A(f"s_lshl_b32 s{T3}, s{SJ}, 15")
    A(f"s_lshl_b32 s{T1}, s{SW}, 11")
    A(f"s_add_u32 s{T3}, s{T3}, s{T1}")
    A(f"s_add_u32 s{T3}, s{T3}, {WS_H2}")
    A(f"s_add_u32 s{T2}, s{T3}, {GOFF}")
    A(f"s_lshl_b32 s{T4}, s68, 10")
    A(f"s_lshl_b32 s{T1}, s{SW}, 7")
    A(f"s_add_u32 s{T4}, s{T4}, s{T1}")
    A(f"s_add_u32 s{T4}, s{T4}, {WS_ACT}")
    A(f"v_lshlrev_b32 v24, 4, v{VC}")
    if p.diag and p.GSTAMP:
        A("s_waitcnt vmcnt(0)")
        A.stamp(12)
    A(f"s_cmp_lg_u32 s{SW}, 15")
    A("s_cbranch_scc1 L_GUw")
    prepoll(A, T2, (0, 128))
    A.signal(E_W2)
    A.label("L_GUw")
    A.wait_cnt(E_W2, 1)
    A.stamp(8)
    A.poll([(8, 26, 0, None), (12, 26, 64, None)], T3, local=True)
    A.stamp(9)
    A.pack8(8, 16)
    A.perm(R1, R0)
    A.mfma(R2, 16, R0, True)
    A.diag_add(R2)
    red_store(A, 22, C_G)
    A.stamp(10)
    A(f"s_cmp_ge_u32 s{SW}, 8")
    A("s_cbranch_scc1 L_fin")
    A.wait_cnt(C_G, 16)
    red_fin(A, 23, 4)
    A.rnd(R0)
    A(f"v_mov_b32_dpp v{R0+1}, v{R0} row_ror:8 row_mask:0xf bank_mask:0xf")
    A.silu(R0, R0 + 2)
    A.rnd(R0)
    A(f"v_mul_f32 v{R0}, v{R0}, v{R0+1}")
    A.rnd_tag(R0)
    regather(A, R0)
    A("s_mov_b64 exec, 0xff")
    A.pub(R0, 24, T4)
    A("s_mov_b64 exec, -1")
    A.stamp(11)
    A("s_branch L_fin")
    A.label("L_MK")
    A(f"v_lshrrev_b32 v4, 3, v{VL}")
    A("v_lshlrev_b32 v6, 8, v4")
    A(f"v_and_b32 v5, 7, v{VL}")
    A("v_lshl_add_u32 v6, v5, 4, v6")
    A(f"s_sub_u32 s{T0}, s{SR}, 14")
    A(f"s_lshl_b32 s{T0}, s{T0}, 7")
    A(f"s_lshl_b32 s{T1}, s{SW}, 11")
    A(f"s_add_u32 s67, s{T0}, s{T1}")
    A(f"s_add_u32 s{T3}, s67, {WS_SB}")
    A(f"v_and_b32 v5, 3, v{VL}")
    A("v_lshlrev_b32 v26, 3, v5")
    A(f"s_lshl_b32 s{T1}, s{SW}, 7")
    A(f"v_lshl_add_u32 v25, v{VG}, 5, v26")
    A(f"v_add_u32 v25, s{T1}, v25")
    A(f"v_lshlrev_b32 v24, 3, v{VL}")
    A(f"s_lshl_b32 s{T4}, s{SJ}, 15")
    A(f"s_add_u32 s{T4}, s{T4}, s67")
    A(f"s_add_u32 s{T4}, s{T4}, {WS_H2}")
    A("s_waitcnt vmcnt(0)")
    A(f"s_cmp_lg_u32 s{SW}, 3")
    A("s_cbranch_scc1 L_MKw1")
    prepoll(A, T3, (0, WS_CB - WS_SB))
    A.signal(E_W2)
    A.label("L_MKw1")
    A.wait_cnt(E_W2, 1)
    A.wait_cnt(E_O, 2)
    A.poll([(12, 6, 0, None), (16, 6, 0, WS_CB - WS_SB)], T3)
    A.stamp(7)
    A(f"s_add_u32 s{T3}, s67, {WS_X1}")
    A(f"s_cmp_lg_u32 s{SW}, 3")
    A("s_cbranch_scc1 L_MKw2")
    prepoll(A, T3, (0,))
    A.signal(E_W3)
    A.label("L_MKw2")
    A.wait_cnt(E_W3, 1)
    A.poll([(8, 6, 0, None)], T3)
    A.stamp(8)
    A("v_pk_add_f32 v[20:21], v[8:9], v[10:11]")
    A("v_pk_mul_f32 v[22:23], v[8:9], v[8:9]")
    A("v_pk_fma_f32 v[22:23], v[10:11], v[10:11], v[22:23]")
    A("v_add_f32 v20, v20, v21")
    A("v_add_f32 v21, v22, v23")
    for rr in (4, 8):
        for v in (20, 21):
            A(f"v_add_f32_dpp v{v}, v{v}, v{v} row_ror:{rr} row_mask:0xf bank_mask:0xf")
    A("s_mov_b32 exec_lo, 0x000f000f\ns_mov_b32 exec_hi, 0x000f000f")
    A(f"ds_write_b64 v25, v[20:21] offset:{L_ST2}")
    A("s_mov_b64 exec, -1")
    A.signal(C_MK)
    A(f"s_cmp_lg_u32 s{SW}, 0")
    A("s_cbranch_scc1 L_MKn")
    A.wait_cnt(C_MK, 16)
    A.stamp(10)
    for k in range(4):
        A(f"ds_read_b64 v[{R0+2*k}:{R0+2*k+1}], v24 offset:{L_ST2 + 512*k}")
    A("s_waitcnt lgkmcnt(0)")
    A(f"v_pk_add_f32 v[{R0}:{R0+1}], v[{R0}:{R0+1}], v[{R0+2}:{R0+3}]")
    A(f"v_pk_add_f32 v[{R0+4}:{R0+5}], v[{R0+4}:{R0+5}], v[{R0+6}:{R0+7}]")
    A(f"v_pk_add_f32 v[20:21], v[{R0}:{R0+1}], v[{R0+4}:{R0+5}]")
    for rr in (4, 8):
        for v in (20, 21):
            A(f"v_add_f32_dpp v{v}, v{v}, v{v} row_ror:{rr} row_mask:0xf bank_mask:0xf")
    A("v_permlane32_swap_b32 v20, v21")
    A("v_add_f32 v20, v20, v21")
    A("v_mov_b32 v21, v20")
    A("v_permlane16_swap_b32 v20, v21")
    A("v_add_f32 v20, v20, v21")
    A("v_mul_f32 v20, 0x3a800000, v20")
    A("v_mov_b32 v21, v20")
    A("v_permlane32_swap_b32 v20, v21")
    A("v_fma_f32 v21, -v20, v20, v21")
    A("v_max_f32 v21, 0, v21")
    ln_finish(A, 20, 21, 7)
    A("s_mov_b64 exec, 0xf")
    A(f"ds_write_b64 v26, v[20:21] offset:{L_MS}")
    A("s_mov_b64 exec, -1")
    A.signal(E_MS)
    A.stamp(11)
    A.label("L_MKn")
    A.wait_cnt(E_MS, 1)
    A.stamp(12)
    A(f"ds_read_b64 v[20:21], v26 offset:{L_MS}")
    A("s_waitcnt lgkmcnt(0)")
    for k in (8, 10):
        A(f"v_pk_add_f32 v[{k}:{k+1}], v[{k}:{k+1}], v[20:21] op_sel_hi:[1,0] neg_lo:[0,1] neg_hi:[0,1]")
    for k in (8, 10):
        A.rnd2(k, k + 1, 22 + (k >> 1 & 1))
    for k in (8, 10):
        A(f"v_pk_mul_f32 v[{k}:{k+1}], v[{k}:{k+1}], v[20:21] op_sel:[0,1] op_sel_hi:[1,1]")
    for k in (8, 10):
        A.rnd2(k, k + 1, 22 + (k >> 1 & 1))
    for k in (8, 10):
        A(f"v_pk_mul_f32 v[{k}:{k+1}], v[{k}:{k+1}], v[{k+8}:{k+9}]")
    for k in (8, 10):
        A.rnd2(k, k + 1, 22 + (k >> 1 & 1))
    for k in (8, 10):
        A(f"v_pk_add_f32 v[{k}:{k+1}], v[{k}:{k+1}], v[{k+4}:{k+5}]")
    for k in (8, 10):
        t = 22 + (k >> 1 & 1)
        A(f"v_cvt_pk_bf16_f32 v{t}, v{k}, v{k+1}")
        A(f"v_lshl_or_b32 v{k}, v{t}, 16, v{VTAG}")
        A(f"v_and_or_b32 v{k+1}, v{t}, s{SHM}, v{VTAG}")
    A.stamp(13)
    A.pub(8, 6, T4, 0, local=True)
    A.pub_g(8, 6, T4, 0)
    A.stamp(9)
    A("s_branch L_fin")


def role_FQ(A):
    p = A.p
    A.label("L_FQ")
    A.srd(D1, S_WQ, 8388608)
    dp_voff(A, 7, 8192, 5)
    A(f"s_lshl_b32 s68, s{SR}, 2")
    A(f"s_lshr_b32 s{T1}, s{SJ}, 1")
    A(f"s_add_u32 s68, s68, s{T1}")
    A(f"s_and_b32 s67, s{SJ}, 1")
    A(f"s_lshl_b32 s{T2}, s67, 3")
    A(f"s_add_u32 s{T2}, s{T2}, s{SW}")
    A(f"s_lshl_b32 s{T3}, s{T2}, 19")
    A(f"s_lshl_b32 s{T1}, s68, 7")
    A(f"s_add_u32 s{T3}, s{T3}, s{T1}")
    ld = A.tile_loads(D1, 7, T3, 8 * 8192, R1)
    A.loads(ld[:p.WQ0], None)
    A.init_sync()
    if p.WQ0 < 8:
        A("s_waitcnt vmcnt(0)")
    A.loads(ld[p.WQ0:], p.WIN_Q)
    hx_voff(A, 26, 5)
    red_addr(A, 22, 23, 2)
    A(f"s_lshl_b32 s{T3}, s{T2}, 11")
    A(f"s_add_u32 s{T3}, s{T3}, {WS_H}")
    A(f"s_lshl_b32 s{T4}, s67, 17")
    A(f"s_lshl_b32 s{T1}, s{SW}, 14")
    A(f"s_add_u32 s{T4}, s{T4}, s{T1}")
    A(f"s_lshl_b32 s{T1}, s68, 8")
    A(f"s_add_u32 s{T4}, s{T4}, s{T1}")
    A(f"s_add_u32 s{T4}, s{T4}, {WS_Q}")
    A(f"v_lshlrev_b32 v24, 4, v{VC}")
    A(f"s_waitcnt vmcnt({p.TRIG_Q})")
    A.signal(C_WQ)
    perm_prog(A, R1, R0)
    A.stamp(1)
    if p.PRE_H:
        prepoll(A, T3, (0,))
    A.poll([(8, 26, 0, None), (12, 26, 64, None)], T3)
    A.stamp(2)
    A.pack8(8, 16)
    A.mfma(R2, 16, R0, True)
    A.diag_add(R2)
    red_store(A, 22, C_G)
    A.wait_cnt(C_G, 8)
    red_fin(A, 23, 2)
    A.tagf((R0,))
    regather(A, R0)
    A("s_mov_b64 exec, 0xffff")
    A.pub(R0, 24, T4)
    A("s_mov_b64 exec, -1")
    A.signal(E_QP)
    A.stamp(3)
    A.srd(D2, S_WO, 8388608)
    A(f"s_lshl_b32 s67, s{SR}, 1")
    A(f"s_lshr_b32 s{T1}, s{SW}, 2")
    A(f"s_add_u32 s67, s67, s{T1}")
    A(f"s_and_b32 s68, s{SW}, 3")
    A(f"s_lshr_b32 s{T0}, s67, 2")
    A(f"s_lshl_b32 s{T0}, s{T0}, 9")
    A(f"s_and_b32 s{T1}, s67, 3")
    A(f"s_lshl_b32 s{T1}, s{T1}, 5")
    A(f"s_add_u32 s{T0}, s{T0}, s{T1}")
    A(f"s_lshl_b32 s{T1}, s68, 3")
    A(f"s_add_u32 s{T0}, s{T0}, s{T1}")
    A(f"s_lshl_b32 s{T2}, s{T0}, 11")
    A(f"s_lshl_b32 s{T1}, s{SJ}, 8")
    A(f"s_add_u32 s{T2}, s{T2}, s{T1}")
    A(f"v_lshlrev_b32 v25, 12, v{VG}")
    A(f"v_lshl_add_u32 v25, v{VC}, 4, v25")
    A.wait_cnt(E_FL, 1)
    A.stamp(4)
    rows = [(r & 3) * 128 + (r >> 2) for r in range(8)]
    A.loads(A.tile_loads(D2, 25, T2, 2048, R1, rows=rows), None)
    t128_prep(A, L_A, WS_XP)
    A(f"v_and_b32 v6, 7, v{VC}")
    A("v_lshlrev_b32 v6, 14, v6")
    A(f"v_lshl_add_u32 v6, v{VG}, 5, v6")
    A(f"s_lshl_b32 s{T3}, s67, 9")
    A(f"s_lshl_b32 s{T0}, s68, 7")
    A(f"s_add_u32 s{T3}, s{T3}, s{T0}")
    A(f"s_add_u32 s{T3}, s{T3}, {WS_O}")
    perm_prog(A, R1, R0)
    A.stamp(5)
    if p.PRE_O:
        prepoll(A, T3, (0,))
    A.poll([(8, 6, 0, None), (12, 6, 16, None)], T3)
    A.stamp(6)
    A.pack8(8, 16)
    A.mfma(R1, 16, R0, True)
    slab_store(A, R1, L_A, 22)
    t128_fin(A, C_WO, L_A)
    A.signal(E_WO)
    A.stamp(7)
    t128_prep(A, L_B, WS_YP)
    A(f"s_cmp_eq_u32 s{SW}, 7")
    A("s_cbranch_scc1 L_FQ7")
    A.srd(D1, S_WD, 7340032)
    A(f"v_lshlrev_b32 v7, 14, v{VG}")
    A(f"v_lshl_add_u32 v7, v{VC}, 4, v7")
    A(f"s_mul_i32 s{T0}, s{SR}, 7")
    A(f"s_add_u32 s{T0}, s{T0}, s{SW}")
    A(f"s_lshl_b32 s{T4}, s{T0}, 16")
    A(f"s_lshl_b32 s{T1}, s{SJ}, 8")
    A(f"s_add_u32 s{T4}, s{T4}, s{T1}")
    A(f"v_and_b32 v6, 7, v{VC}")
    A("v_lshlrev_b32 v6, 7, v6")
    A(f"v_lshl_add_u32 v6, v{VG}, 5, v6")
    A(f"s_lshl_b32 s{T3}, s{T0}, 10")
    A(f"s_add_u32 s{T3}, s{T3}, {WS_ACT}")
    A("s_waitcnt vmcnt(0)")
    A.wait_cnt(E_X1, 2)
    A.stamp(8)
    A.loads(A.tile_loads(D1, 7, T4, 2048, R1), None)
    perm_prog(A, R1, R0)
    A.stamp(9)
    if p.PRE_ACT:
        prepoll(A, T3, (0,))
    A.poll([(8, 6, 0, None), (12, 6, 16, None)], T3)
    A.stamp(10)
    A.pack8(8, 16)
    A.mfma(R1, 16, R0, True)
    slab_store(A, R1, L_B, 22)
    A.label("L_FQ7")
    t128_fin(A, C_WD, L_B)
    A.signal(E_WD)
    A.stamp(11)
    A("s_branch L_fin")


def role_FM(A):
    p = A.p
    A.label("L_FM")
    A.srd(D1, S_WM, 12582912)
    c_load(A)
    A(f"s_sub_u32 s{T0}, s{SW}, 8")
    A(f"s_and_b32 s69, s{T0}, 1")
    A(f"s_lshr_b32 s{T0}, s{T0}, 1")
    A(f"s_cmp_eq_u32 s{T0}, 2")
    A(f"s_cselect_b32 s{T2}, 1, 2")
    A(f"s_cselect_b32 s{T3}, 0, s{T0}")
    A(f"s_add_u32 s{T1}, s{T0}, 3")
    A(f"s_cmp_eq_u32 s{T0}, 2")
    A(f"s_cselect_b32 s{T1}, 2, s{T1}")
    m_setup(A, T1, T2, T3, 69)
    m_bases(A, T2, T3, 69)
    A.d64_voff(7, 12288, 5)
    m_vregs(A)
    A(f"s_cmp_lg_u32 s{SW}, 13")
    A("s_cbranch_scc1 L_FMz")
    for q in range(4):
        A(f"v_mov_b32 v{12+q}, 0")
    for t in range(0, 8, 2):
        if t == 0:
            A(f"v_lshrrev_b32 v4, 5, v{VL}")
            A(f"v_lshl_add_u32 v4, v4, 5, v26")
        A(f"ds_write_b128 v4, v[12:15] offset:{L_B + 7*SLAB + TS*t}")
    A.label("L_FMz")
    A.init_sync()
    A("s_waitcnt vmcnt(0)")
    c_silu(A)
    if p.MTRIG == "wq":
        A.wait_cnt(C_WQ, 8)
    else:
        A.wait_cnt(E_QP, 8)
    A.stamp(1)
    A.loads(A.tile_loads(D1, 7, 67, 12288, R1), p.WIN_M)
    perm_prog(A, R1, R0)
    A.stamp(2)
    m_fin(A)
    m_fin_g(A)
    A.signal(E_M)
    A.stamp(3)
    A(f"s_cmp_ge_u32 s{SW}, 10")
    A("s_cbranch_scc1 L_FMf")
    A(f"s_mov_b32 s{T1}, 5")
    A(f"s_mov_b32 s{T2}, 1")
    m_setup(A, T1, T2, T2, 69)
    A("s_waitcnt vmcnt(0)")
    m_bases(A, T2, T2, 69)
    A.wait_cnt(E_X1, 2)
    A.loads(A.tile_loads(D1, 7, 67, 12288, R1), None)
    perm_prog(A, R1, R0)
    A.stamp(4)
    m_fin(A)
    m_fin_g(A)
    A.signal(E_GB)
    A.stamp(5)
    A("s_branch L_fin")
    A.label("L_FMf")
    A(f"s_cmp_lg_u32 s{SW}, 13")
    A("s_cbranch_scc1 L_fin")
    A(f"s_sub_u32 s{T3}, s2, 128")
    A(f"s_lshl_b32 s{T3}, s{T3}, 6")
    A(f"s_add_u32 s{T3}, s{T3}, {WS_FLAG}")
    prepoll(A, T3, (0,))
    A.signal(E_FL)
    A.stamp(4)
    A("s_branch L_fin")


def role_FR(A):
    p = A.p
    A.label("L_FR")
    A.srd(D1, S_X, 16384)
    A(f"s_lshl_b32 s{SR32}, s{SR}, 1")
    A(f"s_add_u32 s{SR32}, s{SR32}, s{SW}")
    A(f"s_sub_u32 s{SR32}, s{SR32}, 14")
    red_elem_prep(A, D1)
    A(f"s_cmp_eq_u32 s{SW}, 15")
    A("s_cbranch_scc1 L_FR15")
    zero_cnt(A)
    A("s_branch L_FRb")
    A.label("L_FR15")
    if p.prefetch:
        prefetch_code(A)
    A.label("L_FRb")
    A.init_sync()
    A(f"s_add_u32 s{T4}, s{T4}, {WS_SB}")
    A(f"s_lshl_b32 s68, s{SJ}, 17")
    A(f"s_lshl_b32 s{T1}, s{SR32}, 12")
    A(f"s_add_u32 s68, s68, s{T1}")
    A("s_waitcnt vmcnt(0)")
    A("v_lshlrev_b32 v23, 16, v23")
    A.wait_cnt(E_M, 6)
    mp_gather(A, 2, (0, 1, 2, 3))
    for q in range(4):
        A(f"v_add_f32 v{R0+q}, v{R0+q}, v{R0+4+q}")
        A(f"v_add_f32 v{R0+8+q}, v{R0+8+q}, v{R0+12+q}")
    A.packed_red2(R0, R0 + 8)
    A.rnd(R0 + 2)
    A(f"v_add_f32 v{R0+2}, 1.0, v{R0+2}")
    A.rnd_tag(R0)
    A.rnd_tag(R0 + 2)
    A.quad_gather(R0, 8)
    A.quad_gather(R0 + 2, 12)
    A(f"s_add_u32 s{T3}, s{T4}, {WS_CB - WS_SB}")
    set_exec64(A, EX_V)
    A.pub(8, 26, T4)
    A.pub(12, 26, T3)
    A("s_mov_b64 exec, -1")
    A.stamp(1)
    mp_gather(A, 1, (0, 1))
    for q in range(4):
        A(f"v_add_f32 v{R0+q}, v{R0+q}, v{R0+4+q}")
    A.packed_red1(R0)
    A.rnd(R0)
    A(f"v_mov_b32 v24, v{R0}")
    A.stamp(2)
    A(f"s_add_u32 s{T4}, s{T4}, {WS_X1 - WS_SB}")
    A(f"s_add_u32 s{T3}, s68, {WS_XP}")
    A(f"v_lshlrev_b32 v6, 4, v{VL}")
    A.wait_cnt(E_WO, 8)
    A.poll([(R0, 6, 0, None), (R0 + 4, 6, 1024, None)], T3, local=True)
    A.stamp(3)
    for q in range(4):
        A(f"v_add_f32 v{R0+q}, v{R0+q}, v{R0+4+q}")
    A.packed_red1(R0)
    A.rnd(R0)
    A(f"v_mul_f32 v{R0}, v{R0}, v24")
    A.rnd(R0)
    A(f"v_add_f32 v23, v23, v{R0}")
    A.rnd_tag(23)
    A.quad_gather(23, 8)
    set_exec64(A, EX_V)
    A.pub(8, 26, T4)
    A("s_mov_b64 exec, -1")
    A.signal(E_X1)
    A.stamp(4)
    A("v_and_b32 v23, 0xffff0000, v23")
    A.srd(D2, S_OUT, 16384)
    A.wait_cnt(E_GB, 2)
    mp_gather(A, 1, (2, 3))
    for q in range(4):
        A(f"v_add_f32 v{R0+q}, v{R0+q}, v{R0+4+q}")
    A.packed_red1(R0)
    A.rnd(R0)
    A(f"v_mov_b32 v25, v{R0}")
    A.stamp(5)
    A(f"s_add_u32 s{T3}, s68, {WS_YP}")
    A(f"v_lshlrev_b32 v6, 4, v{VL}")
    A.wait_cnt(E_WD, 8)
    A.poll([(R0, 6, 0, None), (R0 + 4, 6, 1024, None)], T3, local=True)
    A.stamp(6)
    for q in range(4):
        A(f"v_add_f32 v{R0+q}, v{R0+q}, v{R0+4+q}")
    A.packed_red1(R0)
    A.rnd(R0)
    A(f"v_mul_f32 v{R0}, v{R0}, v25")
    A.rnd(R0)
    A(f"v_add_f32 v23, v23, v{R0}")
    A("v_cvt_pk_bf16_f32 v23, v23, v23")
    A("s_mov_b32 exec_lo, 0x00ff00ff")
    A("s_mov_b32 exec_hi, 0x00ff00ff")
    A(f"buffer_store_short v23, v22, s[{D2}:{D2+3}], s67 offen")
    A("s_mov_b64 exec, -1")
    A.stamp(7)
    A("s_cmp_lg_u32 s2, 128")
    A("s_cbranch_scc1 L_fin")
    A(f"s_cmp_lg_u32 s{SW}, 14")
    A("s_cbranch_scc1 L_fin")
    A(f"s_add_u32 s{T0}, s{SEP}, 1")
    A(f"v_mov_b32 v4, s{T0}")
    A("v_mov_b32 v5, 0")
    A("s_mov_b64 exec, 1")
    A(f"buffer_store_dword v4, v5, s[{WS}:{WS+3}], 0 offen sc1")
    A("s_mov_b64 exec, -1")
    A("s_branch L_fin")


def build(p):
    A = Gen(p)
    A.raw(f"; @launch grid=(256,1,1) block=(1024,1,1) lds={LDS_BYTES}")
    A.raw('.amdgcn_target "amdgcn-amd-amdhsa--gfx950"')
    kernel_begin(A, KN)
    A.raw("L_start:")
    A.stamp(0)
    A("s_load_dwordx16 s[4:19], s[0:1], 0")
    A("s_load_dwordx8 s[20:27], s[0:1], 64")
    A("s_load_dwordx4 s[28:31], s[0:1], 96")
    A("s_cmp_ge_u32 s2, 256")
    A("s_cbranch_scc1 L_end")
    A("v_lshrrev_b32 v4, 6, v0")
    A("v_and_b32 v0, 63, v0")
    A(f"v_readfirstlane_b32 s{SW}, v4")
    A(f"v_and_b32 v{VC}, 15, v0")
    A(f"v_lshrrev_b32 v{VG}, 4, v0")
    A(f"s_and_b32 s{SJ}, s2, 7")
    A(f"s_lshr_b32 s{SI}, s2, 3")
    A(f"s_and_b32 s{SR}, s{SI}, 15")
    A(f"s_mov_b32 s{SFF}, 0xff")
    A(f"s_mov_b32 s{SLO}, 0x05040100")
    A(f"s_mov_b32 s{SHI}, 0x07060302")
    A(f"s_mov_b32 s{SHM}, 0xffff0000")
    A.stamps_init()
    A("s_waitcnt lgkmcnt(0)")
    A(f"s_load_dword s{SEP}, s[{S_WSP}:{S_WSP+1}], 0")
    A.srd(WS, S_WSP, 0x10000000)
    A(f"s_cmp_ge_u32 s{SI}, 16")
    A("s_cbranch_scc1 L_F")
    A(f"s_cmp_ge_u32 s{SW}, 8")
    A("s_cbranch_scc1 L_EA")
    A(f"s_cmp_ge_u32 s{SW}, 4")
    A("s_cbranch_scc1 L_ES")
    role_EM(A)
    A.label("L_F")
    A(f"s_cmp_ge_u32 s{SW}, 14")
    A("s_cbranch_scc1 L_FR")
    A(f"s_cmp_ge_u32 s{SW}, 8")
    A("s_cbranch_scc1 L_FM")
    role_FQ(A)
    role_ES(A)
    role_FM(A)
    role_FR(A)
    role_EA(A)
    role_E2(A)
    A.label("L_fin")
    A.stamps_out()
    A.label("L_end")
    A("s_endpgm")
    kernel_desc(A, KN, 128, 102)
    return A.text()


def variant(name, **kw):
    p = P()
    for k, v in kw.items():
        assert hasattr(p, k), k
        setattr(p, k, v)
    open(name + ".s", "w").write(build(p))
    p.diag = True
    open(name + "_d.s", "w").write(build(p))


if __name__ == "__main__":
    variant("q3a", MTRIG="qp", VSTAMP=True, GSTAMP=True)
    variant("q3b", MTRIG="qp", VSTAMP=True, GSTAMP=True, KFL="", GFL="")
    variant("q3c", MTRIG="qp", KFL="", GFL="")
```

```python
import sys
from asmgen import *
import gen_p1 as G1
import gen_p2 as G2
from gen_p1 import (Gen, R0, R1, R2, LOG2E, S_X, S_K, S_V, S_WQ, S_WO, S_WG, S_WU, S_WD, S_C, S_WM, S_OUT, S_DBG, S_WSP,
                    WS, D1, D2, D3, SJ, SI, SW, STAG, SFF, SLO, SHI, SHM, T0, T1, T2, T3, T4, T5, T6, T7, SEP, SCNT, SB_,
                    STAMP0, VL, VC, VG, VTAG, EX_V, set_exec64, ln_finish, WS_TS)
from gen_p2 import (m_vregs, c_silu, perm_prog, dp_voff, hx_voff, slab_write, slab_store, red_addr, red_store, red_fin,
                    regather, red_elem_prep, prefetch_code, zero_cnt, SR, SR32, SPA,
                    L_CNT, L_STAT, L_AST, L_MS, L_ST2, L_QF, TS, SLAB, L_RED, L_B, L_A, LDS_BYTES)

WS_XCC = 0x004000
WS_FLAG = 0x008000
WS_H = 0x018000
WS_X1 = 0x020000
WS_SB = 0x030000
WS_CB = 0x038000
WS_Q = 0x040000
WS_O = 0x080000
WS_ACT = 0x0A0000
WS_OPD = 0x100000
WS_OPM = 0x200000
WS_MP = 0x300000
WS_XP = 0x600000
WS_YP = 0x700000
WS_H2 = 0x800000

(C_ST, E_M0, E_H, E_Q, C_A, E_O, C_G, C_MK, C_WQ, E_QP, E_M, C_WO, E_WO, E_X1, E_GB, C_WD, E_WD, E_FL,
 C_MX, C_L, E_W1, E_W2, E_W3, E_MS, E_MODE, E_FG, E_PH, E_PO, E_PA, E_FL2, C_MI, C_MI2) = [4 * k for k in range(32)]
E_HG, E_V1, E_V2, E_AT, E_OC = 128, 132, 136, 140, 144
SMODE = 3
L_V = LDS_BYTES
LDS7 = LDS_BYTES + 8 * SLAB
OS = 272
WSZ = 8 * OS
SXT = 14


class P:
    LIMIT = 200000
    LLIMIT = 4000000
    diag = False
    local = True
    prefetch = True
    prio = False
    psleep = 0
    lsleep = 0
    WQ0 = 2
    KV0 = 0
    WIN_KV = None
    FP1 = 10
    FP2 = 2
    FP3 = 3
    PLIM = 20000
    XLIM = 48
    VSTAMP = False
    GSTAMP = False
    CPF = 0
    USE_FG = True
    USE_FL2 = True
    EARLY = False
    TOUCH = True
    KFIRST = True
    SENT = True
    XP = 0
    WQG = False
    VQ = 8
    QPRE = True
    DD = 'HQOA2'
    GUE = False
    FN = 4
    GM = 1
    KVH = False
    JUNK = 0
    QS = 0
    DUP = 0
    KVA = 0
    PFS = 0
    PFF = ''
    MG = 0
    GU4 = 0
    WQM = 'v'
    SPF = 7
    OCT = 1
    USE_FL = False
    WQS = 8
    XE = True
    HG = 1
    HPRE = 0
    KVW = None
    KVM = 0
    KVMN = 4
    PLF = ''
    DB = dict(m=9, q=9, o=9, n=9, x=9, y=9)
    FIXALL = False
    JSC = ''
    NTK = ''
    GUQ = 8
    GUS = 8
    SBS = 1
    X1S = 1
    OCW = C_L
    UVH = 1
    SCF = 1
    GUC = 0
    GUO = 0
    GUW = None
    WON = 4
    WOC = 1
    GBF = 0
    GUX = 1
    WOM = 0x0f
    PF = 1
    GUE4 = 0
    WDG = 2
    WOV = 0
    OCF = 0
    TXW = 0
    GAQ = 1
    TXF = 1
    WQH = 8
    WDE = 0
    GBE = 0
    ATT = 1
    FQA = 1
    RG = 1
    EPL = 0
    SCN = 8
    XE2 = 0
    NS = 2
    PK = 0
    FS = 0
    LX = 0
    OC1 = 0
    LQ = ''
    PW = 0
    SCG = 0
    X1W = 15
    OT = 0
    XS = 0
    P1 = 1
    CNT = 0
    PP = ''
    DLY = 20
    DLYS = {}
    ORW = 0
    HE = 0
    HP1 = 0
    TOPF = 0
    NSEL = 2


class Gen3(Gen):
    late = False

    def stamp(self, k):
        if k in (7, 12, 13) and self.inE and (self.late == self.p.EARLY):
            return
        super().stamp(k)

    def pubg(self, quad, voff, sbase, off=0):
        o = f" offset:{off}" if off else ""
        self(f"buffer_store_dwordx4 v[{quad}:{quad+3}], v{voff}, s[{WS}:{WS+3}], s{sbase} offen{o} sc1")

    def publ(self, quad, voff, sbase, off=0):
        o = f" offset:{off}" if off else ""
        self(f"buffer_store_dwordx4 v[{quad}:{quad+3}], v{voff}, s[{WS}:{WS+3}], s{sbase} offen{o}{self.p.PLF}")

    def fix(self, f):
        if self.p.FIXALL:
            return f()
        lab = self.newlabel("LFX")
        self(f"s_cmp_eq_u32 s{SMODE}, 1")
        self(f"s_cbranch_scc1 {lab}")
        f()
        self.label(lab)

    def init_sync(self):
        self("s_waitcnt lgkmcnt(0)")
        self(f"s_add_u32 s{STAG}, s{SEP}, 1")
        self(f"s_and_b32 s{STAG}, s{STAG}, 0xff")
        self(f"s_or_b32 s{STAG}, s{STAG}, 0xf00")
        self(f"v_mov_b32 v{VTAG}, s{STAG}")

    def tagm(self, cls):
        self(f"s_mov_b32 s{SFF}, {(1 << self.p.DB[cls]) - 1:#x}")

    def touch(self, ll, sbase):
        if not self.p.TOUCH:
            return 0
        for k, (dst, voff, off, ex) in enumerate(ll):
            o = f" offset:{off}" if off else ""
            self(f"buffer_load_dwordx4 v[{dst}:{dst+3}], v{voff}, s[{WS}:{WS+3}], s{sbase} offen{o} sc1")
        return len(ll)

    def wait_cnt(self, cnt, n, t0=4, t1=5, sleep=0):
        if self.p.LX:
            self("s_mov_b64 exec, 1")
        super().wait_cnt(cnt, n, t0, t1)
        if self.p.LX:
            self("s_mov_b64 exec, -1")

    def wait_var(self, saddr, sn, t0=4, t1=5):
        lab = self.newlabel("LW")
        if self.p.LX:
            self("s_mov_b64 exec, 1")
        self(f"v_mov_b32 v{t0}, s{saddr}")
        self(f"s_mov_b32 s{SCNT}, 0")
        self.label(lab)
        self(f"ds_read_b32 v{t1}, v{t0}")
        self(f"s_add_u32 s{SCNT}, s{SCNT}, 1")
        self(f"s_cmp_gt_u32 s{SCNT}, {self.p.LLIMIT}")
        self("s_cbranch_scc1 L_end")
        self("s_waitcnt lgkmcnt(0)")
        self(f"v_readfirstlane_b32 s{T7}, v{t1}")
        self(f"s_cmp_lt_u32 s{T7}, s{sn}")
        self(f"s_cbranch_scc1 {lab}")
        if self.p.LX:
            self("s_mov_b64 exec, -1")

    def wait_rd(self, key, cnt, n, reads, t0=4, t1=5):
        if key not in self.p.LQ:
            self.wait_cnt(cnt, n)
            for r in reads:
                self(r)
            return
        lab = self.newlabel("LW")
        self(f"v_mov_b32 v{t0}, {L_CNT+cnt}")
        self(f"s_mov_b32 s{SCNT}, 0")
        self.label(lab)
        self("s_waitcnt lgkmcnt(0)")
        self(f"ds_read_b32 v{t1}, v{t0}")
        for r in reads:
            self(r)
        self(f"s_add_u32 s{SCNT}, s{SCNT}, 1")
        self(f"s_cmp_gt_u32 s{SCNT}, {self.p.LLIMIT}")
        self("s_cbranch_scc1 L_end")
        self(f"s_waitcnt lgkmcnt({len(reads)})")
        self(f"v_readfirstlane_b32 s{T7}, v{t1}")
        self(f"s_cmp_lt_u32 s{T7}, {n}")
        self(f"s_cbranch_scc1 {lab}")

    def get_mode(self):
        self.wait_cnt(E_MODE, 1)
        self(f"s_mov_b32 s{SMODE}, s{T7}")

    def poll2(self, ll, sbase, kinds, sets, dly, acc=4, hook=None):
        if len(kinds) == 1:
            kinds = kinds * len(ll)
        n = len(ll)
        cl = sorted(set(kinds) - {'b'})
        assert len(cl) <= 1
        cm = (1 << (self.p.DB[cl[0]] - 1)) - 1 if cl else 0xffff
        if cl:
            self(f"s_and_b32 s{SXT}, s{STAG}, {cm:#x}")
        done, lab, dl = self.newlabel("LD"), self.newlabel("LP"), self.newlabel("LY")
        exs = sorted({ex for (_, _, _, ex) in ll if ex is not None})
        assert len(exs) <= 1
        if exs:
            self(f"s_add_u32 s{SB_}, s{sbase}, {exs[0]}")

        def issue(t):
            for k, (dst, voff, off, ex) in enumerate(ll):
                sb = sbase if ex is None else SB_
                o = f" offset:{off}" if off else ""
                self(f"buffer_load_dwordx4 v[{t+4*k}:{t+4*k+3}], v{voff}, s[{WS}:{WS+3}], s{sb} offen{o} sc1{' nt' if kinds[-1] in self.p.NTK else ''}")
        def check(t, left):
            for k, (dst, voff, off, ex) in enumerate(ll):
                self(f"s_waitcnt vmcnt({left-1-k})")
                for q in range(4):
                    self(f"v_xor_b32 v{dst+q}, {'v%d' % VTAG if kinds[k] == 'b' else 's%d' % SXT}, v{t+4*k+q}")
                if k == 0:
                    self(f"v_or3_b32 v{acc}, v{dst}, v{dst+1}, v{dst+2}")
                    self(f"v_or_b32 v{acc}, v{acc}, v{dst+3}")
                else:
                    self(f"v_or3_b32 v{acc}, v{acc}, v{dst}, v{dst+1}")
                    self(f"v_or3_b32 v{acc}, v{acc}, v{dst+2}, v{dst+3}")
            self(f"v_and_b32 v{acc}, {cm:#x}, v{acc}")
            self(f"v_cmp_ne_u32 vcc, 0, v{acc}")
            self(f"s_cbranch_vccz {done}")
            if not cl:
                self("s_mov_b64 exec, vcc")
            elif cl[0] == 'q':
                self("s_or_b32 exec_lo, vcc_lo, vcc_hi")
                self("s_mov_b32 exec_hi, exec_lo")
            else:
                self("s_wqm_b64 exec, vcc")
            issue(t)
        issue(sets[0])
        if hook:
            hook()
        if self.p.P1:
            check(sets[0], n)
        for t in sets[1:]:
            dl = self.newlabel("LY")
            self(f"s_mov_b32 s{SCNT}, {dly}")
            self.label(dl)
            self("s_nop 15")
            self(f"s_sub_u32 s{SCNT}, s{SCNT}, 1")
            self(f"s_cbranch_scc0 {dl}")
            issue(t)
        self(f"s_mov_b32 s{SCNT}, 0")
        self.label(lab)
        for t in sets:
            check(t, n * len(sets))
        self(f"s_add_u32 s{SCNT}, s{SCNT}, 1")
        self(f"s_cmp_lt_u32 s{SCNT}, {self.p.LIMIT}")
        self(f"s_cbranch_scc1 {lab}")
        self("s_branch L_end")
        self.label(done)
        self("s_mov_b64 exec, -1")

    def pollx(self, key, sets, ll, sbase, kinds, hook=None, **kw):
        if key in self.p.PP:
            return self.poll2(ll, sbase, kinds, sets, self.p.DLYS.get(key, self.p.DLY), hook=hook)
        if self.p.diag and self.p.CNT:
            k = dict(H=(4, 6), Q=(3, 12), O=(12, 3), X=(5, 1), A=(12, 13))[key]
            Gen.stamp(self, k[1])
        self.poll(ll, sbase, kinds, hook=hook, **kw)
        if self.p.diag and self.p.CNT:
            self("s_waitcnt lgkmcnt(0)")
            self(f"s_mov_b32 s{STAMP0+2*k[0]}, s{SCNT}")

    def poll(self, ll, sbase, kinds, acc=4, hook=None, skipw=False, gate=None, ent=None):
        if len(kinds) == 1:
            kinds = kinds * len(ll)
        assert len(kinds) == len(ll)
        cl = sorted(set(kinds) - {'b'})
        assert len(cl) <= 1
        cm = (1 << (self.p.DB[cl[0]] - 1)) - 1 if cl else 0xffff
        if cl:
            self(f"s_and_b32 s{SXT}, s{STAG}, {cm:#x}")
        done, lab = self.newlabel("LD"), self.newlabel("LP")
        self(f"s_mov_b32 s{SCNT}, 0")
        exs = sorted({ex for (_, _, _, ex) in ll if ex is not None})
        assert len(exs) <= 1
        if exs:
            self(f"s_add_u32 s{SB_}, s{sbase}, {exs[0]}")
        def issue():
            for k, (dst, voff, off, ex) in enumerate(ll):
                sb = sbase if ex is None else SB_
                o = f" offset:{off}" if off else ""
                self(f"buffer_load_dwordx4 v[{dst}:{dst+3}], v{voff}, s[{WS}:{WS+3}], s{sb} offen{o} sc1{' nt' if kinds[-1] in self.p.NTK else ''}")
        if hook:
            chk = self.newlabel("LC")
            issue()
            if ent:
                self.label(ent)
            hook()
            self(f"s_branch {chk}")
        self.label(lab)
        issue()
        if hook and not skipw:
            self.label(chk)
        self(f"s_add_u32 s{SCNT}, s{SCNT}, 1")
        for k, (dst, voff, off, ex) in enumerate(ll):
            self(f"s_waitcnt vmcnt({len(ll)-1-k})")
            if skipw:
                assert len(ll) == 1
                self.label(chk)
            for q in range(4):
                self(f"v_xor_b32 v{dst+q}, {'v%d' % VTAG if kinds[k] == 'b' else 's%d' % SXT}, v{dst+q}")
            if k == 0:
                self(f"v_or3_b32 v{acc}, v{dst}, v{dst+1}, v{dst+2}")
                self(f"v_or_b32 v{acc}, v{acc}, v{dst+3}")
            else:
                self(f"v_or3_b32 v{acc}, v{acc}, v{dst}, v{dst+1}")
                self(f"v_or3_b32 v{acc}, v{acc}, v{dst+2}, v{dst+3}")
        self(f"v_and_b32 v{acc}, {cm:#x}, v{acc}")
        self(f"v_cmp_ne_u32 vcc, 0, v{acc}")
        self(f"s_cbranch_vccz {done}")
        if not cl:
            self("s_mov_b64 exec, vcc")
        elif cl[0] == 'q':
            self("s_or_b32 exec_lo, vcc_lo, vcc_hi")
            self("s_mov_b32 exec_hi, exec_lo")
        else:
            self("s_wqm_b64 exec, vcc")
        if gate:
            g2 = self.newlabel("LG")
            self(f"s_cmp_gt_u32 s{SCNT}, 1")
            self(f"s_cbranch_scc1 {g2}")
            self(f"s_mov_b64 s[{SPA}:{SPA+1}], exec")
            self("s_mov_b64 exec, -1")
            gate()
            self(f"s_mov_b64 exec, s[{SPA}:{SPA+1}]")
            self(f"s_mov_b32 s{SCNT}, 2")
            self.label(g2)
        self(f"s_cmp_lt_u32 s{SCNT}, {self.p.LIMIT}")
        self(f"s_cbranch_scc1 {lab}")
        self("s_branch L_end")
        self.label(done)
        self("s_mov_b64 exec, -1")


def hx_addr(A, vd, t0, key):
    if key not in A.p.DD:
        return hx_voff(A, vd, t0)
    A(f"v_lshrrev_b32 v{t0}, 3, v{VC}")
    A(f"v_and_b32 v{vd}, 1, v{VG}")
    A(f"v_lshl_add_u32 v{t0}, v{t0}, 2, v{vd}")
    A(f"v_lshlrev_b32 v{t0}, 8, v{t0}")
    A(f"v_and_b32 v{vd}, 3, v{VC}")
    A(f"v_lshl_add_u32 v{vd}, v{vd}, 4, v{t0}")
    A(f"v_bfe_u32 v{t0}, v{VC}, 2, 1")
    A(f"v_lshl_add_u32 v{vd}, v{t0}, 7, v{vd}")
    A(f"v_lshrrev_b32 v{t0}, 1, v{VG}")
    A(f"v_lshl_add_u32 v{vd}, v{t0}, 6, v{vd}")


def hx_gather(A, voff, key, st):
    dd = key in A.p.DD
    A.pollx('H', (R1, R1 + 8), [(8, voff, 0, None), (12, voff, 512 if dd else 64, None)], T3, 'b')
    A.stamp(st)
    A.pack8(8, 16)
    if dd:
        A("v_permlane32_swap_b32 v16, v18")
        A("v_permlane32_swap_b32 v17, v19")


def half16(A, v, key):
    if key in A.p.DD:
        A(f"v_lshrrev_b32 v4, 3, v{VC}")
        A(f"v_lshl_add_u32 v{v}, v4, 4, v{v}")


def ror8_pair(A):
    A("v_mov_b32_dpp v18, v16 row_ror:8 row_mask:0xf bank_mask:0xf")
    A("v_mov_b32_dpp v19, v17 row_ror:8 row_mask:0xf bank_mask:0xf")


def prepoll(A, soff_reg, offs=(0,)):
    lab, done = A.newlabel("LS"), A.newlabel("LSD")
    A(f"s_add_u32 s{SPA}, s{S_WSP}, s{soff_reg}")
    A(f"s_addc_u32 s{SPA+1}, s{S_WSP+1}, 0")
    A(f"s_mov_b32 s{SCNT}, 0")
    A.label(lab)
    regs = (T6, T7)
    for k, o in enumerate(offs):
        A(f"s_load_dword s{regs[k]}, s[{SPA}:{SPA+1}], {o} glc")
    A(f"s_add_u32 s{SCNT}, s{SCNT}, 1")
    A(f"s_cmp_gt_u32 s{SCNT}, {A.p.PLIM}")
    A(f"s_cbranch_scc1 {done}")
    A("s_waitcnt lgkmcnt(0)")
    A(f"s_xor_b32 s{T6}, s{T6}, s{STAG}")
    if len(offs) > 1:
        A(f"s_xor_b32 s{T7}, s{T7}, s{STAG}")
        A(f"s_or_b32 s{T6}, s{T6}, s{T7}")
    A(f"s_and_b32 s{T6}, s{T6}, 0xff")
    A(f"s_cbranch_scc1 {lab}")
    A.label(done)
    A("s_waitcnt lgkmcnt(0)")


def after_kernarg(A):
    A.srd(WS, S_WSP, 0x10000000)


def xcc_store(A):
    A(f"s_getreg_b32 s{T5}, hwreg(HW_REG_XCC_ID, 0, 4)")
    A(f"s_add_u32 s{T0}, s{SEP}, 1")
    A(f"s_lshl_b32 s{T0}, s{T0}, 4")
    A(f"s_or_b32 s{T5}, s{T5}, s{T0}")
    A(f"s_lshl_b32 s{T0}, s{SJ}, 8")
    A(f"s_lshl_b32 s{T1}, s{SI}, 2")
    A(f"s_add_u32 s{T1}, s{T1}, s{T0}")
    A(f"s_add_u32 s{T1}, s{T1}, {WS_XCC}")
    A(f"v_mov_b32 v4, s{T5}")
    A("v_mov_b32 v5, 0")
    A("s_mov_b64 exec, 1")
    A(f"buffer_store_dword v4, v5, s[{WS}:{WS+3}], s{T1} offen")
    A("s_mov_b64 exec, -1")


def xcc_check(A):
    lab, done = A.newlabel("LX"), A.newlabel("LXD")
    A(f"s_lshl_b32 s{T0}, s{SJ}, 8")
    A(f"s_add_u32 s{T0}, s{T0}, {WS_XCC}")
    A(f"v_and_b32 v6, 31, v{VL}")
    A("v_lshlrev_b32 v6, 2, v6")
    A(f"s_mov_b32 s{SCNT}, 0")
    A(f"s_mov_b32 s{SMODE}, {1 if A.p.local else 2}")
    A.label(lab)
    A(f"buffer_load_dword v7, v6, s[{WS}:{WS+3}], s{T0} offen sc1")
    A(f"s_add_u32 s{SCNT}, s{SCNT}, 1")
    A("s_waitcnt vmcnt(0)")
    A(f"v_cmp_ne_u32 vcc, s{T5}, v7")
    A(f"s_cbranch_vccz {done}")
    A(f"s_cmp_lt_u32 s{SCNT}, {A.p.XLIM}")
    A(f"s_cbranch_scc1 {lab}")
    A(f"s_mov_b32 s{SMODE}, 2")
    A.label(done)
    A(f"v_mov_b32 v4, {L_CNT+E_MODE}")
    A(f"v_mov_b32 v5, s{SMODE}")
    A("s_mov_b64 exec, 1")
    A("ds_write_b32 v4, v5")
    A("s_mov_b64 exec, -1")


def xcc_check_s(A):
    A(f"s_getreg_b32 s{T5}, hwreg(HW_REG_XCC_ID, 0, 4)")
    A(f"s_add_u32 s{T0}, s{SEP}, 1")
    A(f"s_lshl_b32 s{T0}, s{T0}, 4")
    A(f"s_or_b32 s{T5}, s{T5}, s{T0}")
    xcc_check(A)


def q_check(A):
    lab, done = A.newlabel("LQ"), A.newlabel("LQD")
    A(f"s_add_u32 s{SPA}, s{S_WSP}, s{T3}")
    A(f"s_addc_u32 s{SPA+1}, s{S_WSP+1}, 0")
    A(f"s_mov_b32 s{SCNT}, 0")
    A.label(lab)
    regs = list(range(4, 12)) + list(range(36, 44))
    for k, r in enumerate(regs):
        A(f"s_load_dword s{r}, s[{SPA}:{SPA+1}], {(k & 7) * 512 + (k >> 3) * 131072} glc")
    A(f"s_add_u32 s{SCNT}, s{SCNT}, 1")
    A(f"s_cmp_gt_u32 s{SCNT}, {A.p.PLIM}")
    A(f"s_cbranch_scc1 {done}")
    A("s_waitcnt lgkmcnt(0)")
    A("s_and_b64 s[12:13], s[4:5], s[6:7]")
    A("s_or_b64 s[4:5], s[4:5], s[6:7]")
    for r in regs[4::2]:
        A(f"s_and_b64 s[12:13], s[12:13], s[{r}:{r+1}]")
        A(f"s_or_b64 s[4:5], s[4:5], s[{r}:{r+1}]")
    A("s_and_b32 s12, s12, s13")
    A("s_or_b32 s4, s4, s5")
    A(f"s_xor_b32 s12, s12, s{STAG}")
    A(f"s_xor_b32 s4, s4, s{STAG}")
    A("s_or_b32 s4, s4, s12")
    A("s_and_b32 s4, s4, 0xff")
    A(f"s_cbranch_scc1 {lab}")
    A.label(done)
    A("s_waitcnt lgkmcnt(0)")


def vpoll(A, soff_reg, offs=(0,)):
    lab, done = A.newlabel("LV"), A.newlabel("LVD")
    A("v_mov_b32 v5, 0")
    A(f"s_mov_b32 s{SCNT}, 0")
    if len(offs) > 1:
        A(f"s_add_u32 s{SB_}, s{soff_reg}, {offs[1]}")
    A("s_mov_b64 exec, 1")
    A.label(lab)
    A(f"buffer_load_dword v6, v5, s[{WS}:{WS+3}], s{soff_reg} offen sc1")
    if len(offs) > 1:
        A(f"buffer_load_dword v7, v5, s[{WS}:{WS+3}], s{SB_} offen sc1")
    A(f"s_add_u32 s{SCNT}, s{SCNT}, 1")
    A("s_waitcnt vmcnt(0)")
    A(f"v_xor_b32 v6, v{VTAG}, v6")
    if len(offs) > 1:
        A(f"v_xor_b32 v7, v{VTAG}, v7")
        A("v_or_b32 v6, v6, v7")
    A("v_and_b32 v6, 0xff, v6")
    A("v_cmp_ne_u32 vcc, 0, v6")
    A(f"s_cbranch_vccz {done}")
    A(f"s_cmp_lt_u32 s{SCNT}, {A.p.PLIM}")
    A(f"s_cbranch_scc1 {lab}")
    A.label(done)
    A("s_mov_b64 exec, -1")


def flag_addr(A, dst, kind, wg_sreg):
    A(f"s_lshl_b32 s{dst}, s{wg_sreg}, 6")
    A(f"s_add_u32 s{dst}, s{dst}, {WS_FLAG + 0x4000*kind}")


def flag_store(A, sreg_w, wsel, saddr, vz):
    lab = A.newlabel("LNF")
    A(f"s_cmp_lg_u32 s{sreg_w}, {wsel}")
    A(f"s_cbranch_scc1 {lab}")
    A("s_mov_b64 exec, 1")
    A(f"buffer_store_dword v{VTAG}, v{vz}, s[{WS}:{WS+3}], s{saddr} offen sc1")
    A("s_mov_b64 exec, -1")
    A.label(lab)


def m_tile_off(A, s_chunk, s_half):
    A(f"s_mul_i32 s67, s{SR}, {64*12288}")
    A(f"s_lshl_b32 s{T4}, s{SJ}, 8")
    A(f"s_add_u32 s67, s67, s{T4}")
    if s_half is not None:
        A(f"s_lshl_b32 s{T4}, s{s_half}, 7")
        A(f"s_add_u32 s67, s67, s{T4}")
    A(f"s_lshl_b32 s{T4}, s{s_chunk}, 11")
    A(f"s_add_u32 s67, s67, s{T4}")


def m_bases(A, s_m, s_sel, s_half):
    A(f"s_lshl_b32 s68, s{s_m}, 20")
    A(f"s_lshl_b32 s{T4}, s{SJ}, 17")
    A(f"s_add_u32 s68, s68, s{T4}")
    A(f"s_add_u32 s68, s68, {WS_MP}")
    if s_half is not None:
        A(f"s_lshl_b32 s{T4}, s{s_half}, 16")
        A(f"s_add_u32 s68, s68, s{T4}")
    A(f"s_lshl_b32 s{T4}, s{s_sel}, 11")
    A(f"s_add_u32 s68, s68, s{T4}")
    A(f"s_lshl_b32 s{T4}, s{SR}, 7")
    A(f"s_add_u32 s68, s68, s{T4}")


def mp_addr(A, m, v=6):
    A(f"s_lshl_b32 s{T3}, s{SJ}, 17")
    A(f"s_lshl_b32 s{T1}, s{SR32}, 12")
    A(f"s_add_u32 s{T3}, s{T3}, {WS_MP + (m << 20)}")
    A(f"s_add_u32 s{T3}, s{T3}, s{T1}")
    A(f"v_lshlrev_b32 v{v}, 4, v{VL}")


def mp_gather(A, m, us):
    mp_addr(A, m)
    A.poll([(R0 + 4 * k, 6, 1024 * u, None) for k, u in enumerate(us)], T3, 'n')


def slab_write(A, acc, lbase, s_idx, va=6):
    if not A.p.PK & 1:
        return G2.slab_write(A, acc, lbase, s_idx, va)
    A(f"s_mul_i32 s{T0}, s{s_idx}, {SLAB}")
    A(f"v_lshrrev_b32 v4, 5, v{VL}")
    A(f"v_mul_u32_u24 v4, {4*TS-512}, v4")
    A(f"v_lshl_add_u32 v{va}, v{VL}, 4, v4")
    A(f"v_add_u32 v{va}, s{T0}, v{va}")


def slab_mfma(A, acc, af, F):
    if not A.p.PK & 1:
        return A.mfma(acc, af, F, True)
    for t in (0, 4, 1, 5, 2, 6, 3, 7):
        A(f"v_mfma_f32_16x16x32_bf16 v[{acc+4*t}:{acc+4*t+3}], v[{af}:{af+3}], v[{F+4*t}:{F+4*t+3}], 0")


def zero8(A, z):
    if A.p.PK & 8:
        for q in range(8):
            A(f"v_mov_b32 v{z+q}, 0")


def split_mfma(A, acc, z, F, lo, hi):
    lo()
    for t in range(4):
        A(f"v_mfma_f32_16x16x32_bf16 v[{acc+4*t}:{acc+4*t+3}], v[{z}:{z+3}], v[{F+4*t}:{F+4*t+3}], 0")
        if t == 0:
            hi()
    for t in range(4):
        A(f"v_mfma_f32_16x16x32_bf16 v[{acc+4*t}:{acc+4*t+3}], v[{z+4}:{z+7}], v[{F+16+4*t}:{F+16+4*t+3}], v[{acc+4*t}:{acc+4*t+3}]")


def pair_mfma(A, acc, z, F):
    if not A.p.PK & 8:
        ror8_pair(A)
        return slab_mfma(A, acc, 16, F)
    ident, ror = "quad_perm:[0,1,2,3]", "row_ror:8"

    def mv(d, m0, m1, bm):
        for q in range(4):
            A(f"v_mov_b32_dpp v{d+q}, v{16+(q&1)} {m0 if q < 2 else m1} row_mask:0xf bank_mask:{bm}")
    split_mfma(A, acc, z, F, lambda: mv(z, ident, ror, "0x3"), lambda: mv(z + 4, ror, ident, "0xc"))


def slab_store(A, acc, lbase, va=6):
    if not A.p.PK & 1:
        return G2.slab_store(A, acc, lbase, va)
    if A.p.PK & 8:
        for t in range(4):
            A(f"ds_write_b128 v{va}, v[{acc+4*t}:{acc+4*t+3}] offset:{lbase + TS*t}")
        return
    for t in range(4):
        for r in range(4):
            A(f"v_permlane32_swap_b32 v{acc+4*t+r}, v{acc+16+4*t+r}")
        A(f"ds_write_b128 v{va}, v[{acc+4*t}:{acc+4*t+3}] offset:{lbase + TS*t}")


def half_store(A, acc, va, lbase, bit):
    if A.p.PK & bit:
        for t in range(2):
            for r in range(4):
                A(f"v_permlane32_swap_b32 v{acc+4*t+r}, v{acc+8+4*t+r}")
            A(f"ds_write_b128 v{va}, v[{acc+4*t}:{acc+4*t+3}] offset:{lbase + 16*t}")
        return
    A("s_mov_b32 exec_hi, 0")
    for t in range(4):
        A(f"ds_write_b128 v{va}, v[{acc+4*t}:{acc+4*t+3}] offset:{lbase + 16*t}")
    A("s_mov_b32 exec_hi, -1")


def t128_prep(A, lbase, dst_region, si, va=22, vr=23, vs=24):
    slab_write(A, None, lbase, si, va)
    A(f"v_lshrrev_b32 v4, 5, v{VL}")
    A(f"v_mul_u32_u24 v{vr}, {4*SLAB}, v4")
    A(f"v_and_b32 v4, 31, v{VL}")
    A(f"v_lshl_add_u32 v{vr}, v4, 4, v{vr}")
    A(f"s_mul_i32 s{T0}, s{si}, {TS}")
    A(f"v_add_u32 v{vr}, s{T0}, v{vr}")
    A(f"v_lshrrev_b32 v4, 3, v{VC}")
    A(f"v_lshlrev_b32 v{vs}, 16, v4")
    A(f"v_and_b32 v4, 1, v{VG}")
    A(f"v_lshl_add_u32 v{vs}, v4, 12, v{vs}")
    A(f"v_and_b32 v4, 7, v{VC}")
    A(f"v_lshl_add_u32 v{vs}, v4, 4, v{vs}")
    A(f"s_lshl_b32 s69, s{SJ}, 17")
    A(f"s_lshl_b32 s{T0}, s{si}, 13")
    A(f"s_add_u32 s69, s69, s{T0}")
    A(f"s_lshl_b32 s{T0}, s{SR}, 7")
    A(f"s_add_u32 s69, s69, s{T0}")
    A(f"s_add_u32 s69, s69, {dst_region}")


def half_sum_pub(A, r, voff, sbase):
    A(f"v_permlane32_swap_b32 v{r}, v{r+2}")
    A(f"v_permlane32_swap_b32 v{r+1}, v{r+3}")
    A(f"v_add_f32 v{r}, v{r}, v{r+2}")
    A(f"v_add_f32 v{r+1}, v{r+1}, v{r+3}")
    A.tagf((r, r + 1))
    A(f"v_mov_b32 v{r+2}, v{r}")
    A(f"v_mov_b32 v{r+3}, v{r+1}")
    A(f"v_permlane32_swap_b32 v{r}, v{r+2}")
    A(f"v_permlane32_swap_b32 v{r+1}, v{r+3}")
    A("s_mov_b32 exec_hi, 0")
    A.publ(r, voff, sbase)
    A.fix(lambda: A.pubg(r, voff, sbase))
    A("s_mov_b32 exec_hi, -1")


def t128_fin(A, lbase, vr=23, vs=24):
    A("s_waitcnt lgkmcnt(0)")
    A("s_barrier")
    for s in range(4):
        A(f"ds_read_b128 v[{R0+4*s}:{R0+4*s+3}], v{vr} offset:{lbase + SLAB*s}")
    A("s_waitcnt lgkmcnt(2)")
    for q in (0, 2):
        A(f"v_pk_add_f32 v[{R0+q}:{R0+q+1}], v[{R0+q}:{R0+q+1}], v[{R0+4+q}:{R0+5+q}]")
    A("s_waitcnt lgkmcnt(0)")
    for q in (0, 2):
        A(f"v_pk_add_f32 v[{R0+8+q}:{R0+9+q}], v[{R0+8+q}:{R0+9+q}], v[{R0+12+q}:{R0+13+q}]")
    for q in (0, 2):
        A(f"v_pk_add_f32 v[{R0+q}:{R0+q+1}], v[{R0+q}:{R0+q+1}], v[{R0+8+q}:{R0+9+q}]")
    half_sum_pub(A, R0, vs, 69)


def head_EM(A):
    A.label("L_EM")
    A(f"s_lshr_b32 s{T0}, s{SW}, 1")
    A(f"s_and_b32 s{T1}, s{SW}, 1")
    m_tile_off(A, T0, T1)
    A.d64_voff(7, 12288, 5)
    A.afrag_voff(6, 2048, 2, 5)
    A(f"s_lshl_b32 s{T3}, s{SR}, 7")
    A("s_waitcnt lgkmcnt(0)")
    A.stamp(12)
    A.srd(D2, S_C, 16384)
    A(f"buffer_load_dwordx4 v[8:11], v6, s[{D2}:{D2+3}], s{T3} offen")
    A.srd(D1, S_WM, 12582912)
    A.loads(A.tile_loads(D1, 7, 67, 12288, R1), None)
    A.stamp(13)
    A(f"s_load_dword s{SEP}, s[{S_WSP}:{S_WSP+1}], 0")
    A("s_barrier")
    A("s_branch L_EM2")


def role_EM(A):
    p = A.p
    A.label("L_EM2")
    A.srd(WS, S_WSP, 0x10000000)
    A(f"s_mov_b32 s{T2}, 0")
    m_bases(A, T2, T0, T1)
    m_vregs(A)
    A.tagm('m')
    if not p.EPL:
        A.init_sync()
    A.stamp(3)
    A("s_waitcnt vmcnt(8)")
    A.stamp(4)
    c_silu(A)
    perm_prog(A, R1, R0)
    A.stamp(1)
    acc = R2
    A.mfma(acc, 28, R0, True)
    A.diag_add(acc)
    if p.EPL:
        A.init_sync()
    A.tagf(range(acc, acc + 8))
    A.publ(acc, 24, 68)
    A.publ(acc + 4, 25, 68)
    A.signal(E_M0)
    A.stamp(2)
    if p.QS:
        A(f"s_cmp_lg_u32 s{SW}, 1")
        A("s_cbranch_scc1 L_EMx")
        xcc_check_s(A)
        A.label("L_EMx")
    A.get_mode()
    A.fix(lambda: (A.pubg(acc, 24, 68), A.pubg(acc + 4, 25, 68)))
    A("s_branch L_WO")


def head_ES(A):
    A.label("L_ES")
    A(f"s_sub_u32 s{T0}, s{SW}, 4")
    A("s_waitcnt lgkmcnt(0)")
    A(f"s_load_dword s{SEP}, s[{S_WSP}:{S_WSP+1}], 0")
    A("s_barrier")
    A("s_branch L_ES2")


def ln_stats(A, xb=8, w0=4):
    A(f"s_mov_b32 s{T0}, 0x3f803f80")
    for d in range(16):
        a = 4 + (d & 1)
        q = 6 + (d & 1)
        A(f"v_dot2_f32_bf16 v{a}, v{xb+d}, s{T0}, {'0' if d < 2 else 'v%d' % a}")
        A(f"v_dot2_f32_bf16 v{q}, v{xb+d}, v{xb+d}, {'0' if d < 2 else 'v%d' % q}")
    A("s_nop 2")
    A("v_add_f32 v4, v4, v5")
    A("v_add_f32 v5, v6, v7")
    for b in (0, 1, 2, 3):
        A.bfly(4, 6, "v_add_f32", bits=(b,))
        A.bfly(5, 7, "v_add_f32", bits=(b,))
    A("v_permlane16_swap_b32 v4, v5")
    A("v_add_f32 v4, v4, v5")
    A("v_mul_f32 v4, 0x3a800000, v4")
    A("v_mov_b32 v5, v4")
    A("v_permlane16_swap_b32 v4, v5")
    A("v_fma_f32 v5, -v4, v4, v5")
    A("v_max_f32 v5, 0, v5")
    ln_finish(A, 4, 5, 6)
    A(f"s_sub_u32 s{T0}, s{SW}, {w0}")
    A(f"s_lshl_b32 s{T0}, s{T0}, 4")
    A(f"v_lshrrev_b32 v6, 5, v{VL}")
    A("v_lshlrev_b32 v6, 3, v6")
    A(f"v_add_u32 v6, s{T0}, v6")
    A("s_mov_b32 exec_lo, 1")
    A("s_mov_b32 exec_hi, 1")
    A(f"ds_write_b64 v6, v[4:5] offset:{L_STAT}")
    A("s_mov_b64 exec, -1")
    A.signal(C_ST)


def oc_addr(A):
    A(f"v_lshlrev_b32 v6, 4, v{VL}")
    A(f"v_lshrrev_b32 v7, 5, v{VL}")
    A("v_lshlrev_b32 v7, 5, v7")
    A(f"s_lshl_b32 s{T3}, s{SJ}, 5")
    A(f"s_add_u32 s{T3}, s{T3}, s{SR32}")
    A(f"s_lshl_b32 s{T4}, s{T3}, 9")
    A(f"s_add_u32 s{T4}, s{T4}, {WS_O}")
    A(f"s_lshr_b32 s{T2}, s{T3}, 2")
    A(f"s_lshl_b32 s{T2}, s{T2}, 7")
    A(f"s_lshl_b32 s{T3}, s{T3}, 11")
    A(f"s_sub_u32 s{T2}, s{T2}, s{T3}")
    A(f"s_add_u32 s{T2}, s{T2}, {WS_OPM - WS_OPD}")
    A(f"s_add_u32 s{T3}, s{T3}, {WS_OPD}")
    A(f"v_add_u32 v7, s{T2}, v7")


def role_ES(A):
    p = A.p
    A.label("L_ES2")
    after_kernarg(A)
    A(f"s_lshl_b32 s{SR32}, s{SR}, 1")
    A(f"s_add_u32 s{SR32}, s{SR32}, s{T0}")
    A(f"s_cmp_ge_u32 s{SW}, 6")
    A("s_cbranch_scc1 L_ES67")
    if p.SPF:
        A("s_getpc_b64 s[44:45]")
        A.raw("L_pc1:")
        A("s_sub_u32 s44, s44, L_pc1-L_start")
        A("s_subb_u32 s45, s45, 0")
        A(f"s_lshl_b32 s{T1}, s{SR32}, 7")
        for k in range(p.SPF):
            A(f"s_min_u32 s{T2}, s{T1}, L_end-L_start")
            A(f"s_load_dword s46, s[44:45], s{T2}")
            A(f"s_add_u32 s{T1}, s{T1}, 4096")
    if p.TOUCH:
        oc_addr(A)
        if p.OCT:
            A.wait_cnt(E_M0, 4)
        A.touch([(R0, 7, 0, None), (R0 + 4, 6, 0, None), (R0 + 8, 6, 1024, None)], T3)
    A.init_sync()
    A("s_branch L_ESq")
    A.label("L_ES67")
    A.init_sync()
    A(f"s_cmp_eq_u32 s{SW}, 7")
    A("s_cbranch_scc1 L_ES7")
    if p.QS == 1:
        A("s_branch L_ESq")
    A(f"s_lshl_b32 s{T3}, s{SJ}, 14")
    A(f"s_lshr_b32 s{T1}, s{SR}, 2")
    A(f"s_lshl_b32 s{T1}, s{T1}, 12")
    A(f"s_add_u32 s{T3}, s{T3}, s{T1}")
    A(f"s_add_u32 s{T3}, s{T3}, {WS_Q}")
    A.wait_cnt(E_V1, 8)
    if p.QPRE:
        prepoll(A, T3, (0, 131072 + 7 * 512))
    A.signal(E_W1)
    A.stamp(1)
    A("s_branch L_ESq")
    A.label("L_ES7")
    xcc_store(A)
    if not p.QS:
        xcc_check(A)
    A.label("L_ESq")
    if p.XP in (1, 2):
        A("s_branch L_fin")
    A(f"v_and_b32 v6, 7, v{VC}")
    A("v_lshlrev_b32 v6, 9, v6")
    A(f"v_lshl_add_u32 v6, v{VG}, 5, v6")
    half16(A, 6, "Q")
    A(f"s_lshl_b32 s{T3}, s{SJ}, 14")
    A(f"s_lshr_b32 s{T1}, s{SR}, 2")
    A(f"s_lshl_b32 s{T1}, s{T1}, 12")
    A(f"s_add_u32 s{T3}, s{T3}, s{T1}")
    A(f"s_add_u32 s{T3}, s{T3}, {WS_Q}")
    A(f"s_sub_u32 s{T0}, s{SW}, 4")
    A(f"s_lshl_b32 s{T1}, s{T0}, 7")
    A(f"s_add_u32 s{T3}, s{T3}, s{T1}")
    A(f"v_lshlrev_b32 v7, 4, v{VL}")
    if "Q" in p.DD:
        A("v_and_b32 v7, 0x37f, v7")
        A("v_lshl_add_u32 v7, v4, 3, v7")
    A(f"s_lshl_b32 s{T1}, s{T0}, 10")
    A(f"v_add_u32 v24, s{T1}, v7")
    if p.QS == 1:
        A.wait_cnt(E_V1, 8)
        q_check(A)
        A.stamp(1)
    else:
        if not p.QS:
            A("s_waitcnt vmcnt(0)")
        A.wait_cnt(E_W1, 1)
    if "Q" in p.DD:
        A.pollx('Q', (R0, R0 + 8), [(8, 6, 0, None), (16, 6, 0, 131072)], T3, 'q', hook=(lambda: A.signal(E_HG)) if p.QS else None)
        A.stamp(4)
        for q in range(4):
            A(f"v_add_f32 v{8+q}, v{8+q}, v{16+q}")
        for q in range(2):
            A(f"v_cvt_pk_bf16_f32 v{16+q}, v{8+2*q}, v{9+2*q}")
        A(f"ds_write_b64 v24, v[16:17] offset:{L_QF}")
    else:
        A.poll([(8, 6, 0, None), (12, 6, 16, None), (16, 6, 0, 131072), (20, 6, 16, 131072)], T3, 'q')
        A.stamp(4)
        for q in range(8):
            A(f"v_add_f32 v{8+q}, v{8+q}, v{16+q}")
        for q in range(4):
            A(f"v_cvt_pk_bf16_f32 v{16+q}, v{8+2*q}, v{9+2*q}")
        A(f"ds_write_b128 v24, v[16:19] offset:{L_QF}")
    A.signal(E_Q)
    if p.OCF:
        A("s_branch L_WO")
        A.label("L_OC")
        A(f"s_lshl_b32 s{SR32}, s{SR}, 1")
    else:
        A(f"s_cmp_eq_u32 s{SW}, 6")
        A("s_cbranch_scc1 L_ESst")
        A(f"s_cmp_lg_u32 s{SW}, 4")
        A("s_cbranch_scc1 L_WO")
    o_combine(A)
    A("s_branch L_WO2" if p.OCF else "s_branch L_WO")
    A.label("L_ESst")
    A(f"v_and_b32 v7, 7, v{VL}")
    A("v_lshlrev_b32 v6, 5, v7")
    A(f"s_lshl_b32 s{T4}, s{SJ}, 2")
    A(f"s_lshr_b32 s{T1}, s{SR}, 2")
    A(f"s_add_u32 s{T4}, s{T4}, s{T1}")
    A(f"s_lshl_b32 s{T4}, s{T4}, 8")
    A(f"s_and_b32 s{T1}, s{SR}, 3")
    A(f"s_lshl_b32 s{T1}, s{T1}, 5")
    A(f"s_add_u32 s{T4}, s{T4}, s{T1}")
    A(f"s_add_u32 s{T4}, s{T4}, {WS_OPM}")
    A("v_lshrrev_b32 v24, 2, v7")
    A("v_lshlrev_b32 v24, 7, v24")
    A("v_and_b32 v7, 3, v7")
    A("v_lshl_add_u32 v24, v7, 2, v24")
    A.tagm('o')
    A.get_mode()
    A.wait_rd('l', C_L, 8, [f"ds_read_b128 v[{8+4*k}:{11+4*k}], v6 offset:{L_AST+o}" for k, o in enumerate((0, 16, 256, 272))])
    A("s_waitcnt lgkmcnt(2)")
    A("v_max3_f32 v8, v8, v9, v10")
    A("v_max3_f32 v11, v11, v12, v13")
    A("v_max3_f32 v8, v8, v14, v15")
    A("v_max_f32 v8, v8, v11")
    A("s_waitcnt lgkmcnt(0)")
    for q in range(4):
        A(f"v_add_f32 v{16+q}, v{16+q}, v{20+q}")
    A("v_add_f32 v16, v16, v17")
    A("v_add_f32 v18, v18, v19")
    A("v_add_f32 v9, v16, v18")
    A(f"v_or_b32 v8, v8, v{VTAG}")
    A.tagf((9,))
    A("s_mov_b64 exec, 0xff")
    A(f"buffer_store_dword v8, v24, s[{WS}:{WS+3}], s{T4} offen")
    A(f"buffer_store_dword v9, v24, s[{WS}:{WS+3}], s{T4} offen offset:16")

    def fx():
        A(f"buffer_store_dword v8, v24, s[{WS}:{WS+3}], s{T4} offen sc1")
        A(f"buffer_store_dword v9, v24, s[{WS}:{WS+3}], s{T4} offen offset:16 sc1")
    A.fix(fx)
    A("s_mov_b64 exec, -1")
    A.stamp(3)
    A("s_branch L_WO2" if p.OCF else "s_branch L_WO")


def role_EA(A):
    p = A.p
    A.label("L_EA")
    after_kernarg(A)
    A.srd(D2, S_K, 33554432)
    A.srd(D3, S_V, 33554432)
    A(f"s_sub_u32 s69, s{SW}, 8")
    A(f"s_lshl_b32 s67, s{SJ}, 2")
    A(f"s_lshr_b32 s{T1}, s{SR}, 2")
    A(f"s_add_u32 s67, s67, s{T1}")
    A(f"s_lshl_b32 s67, s67, 12")
    A(f"s_and_b32 s{T1}, s{SR}, 3")
    A(f"s_lshl_b32 s{T1}, s{T1}, 8")
    A(f"s_add_u32 s67, s67, s{T1}")
    A(f"s_lshl_b32 s{T1}, s69, 5")
    A(f"s_add_u32 s67, s67, s{T1}")
    A(f"s_add_u32 s67, s67, 3072")
    A(f"s_lshl_b32 s67, s67, 8")
    A(f"s_add_u32 s68, s67, 4096")
    A(f"v_and_b32 v24, 7, v{VC}")
    A("v_lshlrev_b32 v24, 8, v24")
    A(f"v_lshrrev_b32 v4, 3, v{VC}")
    A("v_lshl_add_u32 v24, v4, 6, v24")
    A(f"v_lshl_add_u32 v24, v{VG}, 4, v24")
    A(f"v_lshrrev_b32 v4, 1, v{VG}")
    A("v_lshlrev_b32 v25, 12, v4")
    A(f"v_and_b32 v4, 1, v{VG}")
    A("v_lshl_add_u32 v25, v4, 10, v25")
    A(f"v_lshl_add_u32 v25, v{VC}, 4, v25")
    kv = []
    for t in range(4):
        for pp in range(2):
            kv.append(f"buffer_load_dwordx4 v[{R0+8*t+4*pp}:{R0+8*t+4*pp+3}], v24, s[{D2}:{D2+3}], s{67+(t>>1)} offen offset:{2048*(t&1)+128*pp} nt")
    kv += A.tile_loads(D3, 25, 67, 256, R2, rows=[0, 1, 2, 3, 8, 9, 10, 11])
    A.init_sync()
    A.loads(kv[:p.KV0], None)
    k1 = max(p.KV0, p.KVA)
    if k1 > p.KV0:
        A.wait_cnt(E_M0, 1)
        A.loads(kv[p.KV0:k1], None)
    A.wait_cnt(E_M0, p.KVMN)
    A.stamp(1)
    FP = p.FP1
    assert FP >= 8 and k1 <= 8
    out = A.loads(kv[k1:8], p.WIN_KV)
    if p.KFIRST and k1 < 8:
        A.signal(C_WQ)
        A.wait_cnt(C_WQ, 8)
    for k in range(8, 8 + p.VQ + 1):
        if k == FP:
            A.signal(E_V2)
        if k < 8 + p.VQ:
            if p.KVW is not None:
                A(f"s_waitcnt vmcnt({p.KVW-1})")
            A(kv[k])
    A.signal(E_V1)
    slab_write(A, None, L_A, 69, 22)
    A(f"s_lshl_b32 s{T1}, s69, 2")
    A(f"v_and_b32 v23, 7, v{VC}")
    A(f"v_lshlrev_b32 v21, 5, v23")
    A(f"v_add_u32 v23, s{T1}, v21")
    A(f"v_lshrrev_b32 v4, 5, v{VL}")
    A(f"s_mov_b32 s{T0}, {4*SLAB}")
    A(f"v_mul_lo_u32 v20, v4, s{T0}")
    A(f"v_and_b32 v5, 7, v{VL}")
    A(f"s_mov_b32 s{T0}, {TS}")
    A(f"v_mul_lo_u32 v5, v5, s{T0}")
    A("v_add_u32 v20, v20, v5")
    A(f"v_bfe_u32 v5, v{VL}, 3, 2")
    A("v_lshl_add_u32 v20, v5, 4, v20")
    A(f"s_lshl_b32 s{T0}, s69, 6")
    A(f"v_add_u32 v20, s{T0}, v20")
    A(f"v_and_b32 v5, 31, v{VL}")
    A("v_lshlrev_b32 v19, 4, v5")
    opd_base(A, T3, 69)
    A.tagm('o')
    A(f"v_and_b32 v7, 7, v{VC}")
    A(f"v_lshl_add_u32 v7, v{VG}, 4, v7")
    A("v_lshlrev_b32 v7, 4, v7")
    A(f"v_lshrrev_b32 v4, 3, v{VC}")
    A("v_lshl_add_u32 v7, v4, 10, v7")
    if p.QS and p.VQ < 8:
        A.wait_cnt(E_HG, 4)
        A.loads(kv[8 + p.VQ:], None)
    A.get_mode()
    if p.ATT:
        return attn2(A)
    if p.diag and not (p.QS and p.VQ < 8):
        A(f"s_waitcnt vmcnt({0 if p.VSTAMP else p.VQ})")
        A.stamp(5)
    A.wait_cnt(E_Q, 4)
    QF = R1
    for u in range(2):
        A(f"ds_read_b128 v[{QF+4*u}:{QF+4*u+3}], v7 offset:{L_QF+2048*u}")
    for k in range(17 if p.QS else 8 + p.VQ, 17):
        if k == FP and k > 8 + p.VQ:
            A.signal(E_V2)
        if k < 16:
            A(kv[k])
    A("s_waitcnt vmcnt(8) lgkmcnt(0)")
    A.stamp(2)
    S = 24
    DA = [S, S + 4, R1 + 8, R1 + 12]
    for pp in range(2):
        for t in range(4):
            c = "0" if pp == 0 else f"v[{DA[t]}:{DA[t]+3}]"
            A(f"v_mfma_f32_16x16x32_bf16 v[{DA[t]}:{DA[t]+3}], v[{R0+8*t+4*pp}:{R0+8*t+4*pp+3}], v[{QF+4*pp}:{QF+4*pp+3}], {c}")
    for t in range(2):
        for r in range(4):
            A(f"v_permlane32_swap_b32 v{DA[t]+r}, v{DA[t+2]+r}")
    for t in range(2):
        for r in range(4):
            A(f"v_add_f32_dpp v{DA[t]+r}, v{DA[t+2]+r}, v{DA[t]+r} row_ror:8 row_mask:0xf bank_mask:0xf")
    for k in range(S, S + 8, 2):
        A.rnd2(k, k + 1, 4)
        A(f"v_mul_f32 v{k}, 0x3db504f3, v{k}")
        A(f"v_mul_f32 v{k+1}, 0x3db504f3, v{k+1}")
        A.rnd2(k, k + 1, 5)
    A(f"v_max3_f32 v6, v{S}, v{S+1}, v{S+2}")
    A(f"v_max3_f32 v7, v{S+3}, v{S+4}, v{S+5}")
    A(f"v_max3_f32 v6, v6, v{S+6}, v{S+7}")
    A("v_max_f32 v6, v6, v7")
    A.bfly(6, 5, "v_max_f32", bits=(4, 5))
    A("s_mov_b64 exec, 0xff")
    A(f"ds_write_b32 v23, v6 offset:{L_AST}")
    A("s_mov_b64 exec, -1")
    A.signal(C_MX)
    for k in range(S, S + 8):
        A(f"v_mul_f32 v{k}, {LOG2E:#x}, v{k}")
    A.wait_cnt(C_MX, 8)
    A(f"ds_read_b128 v[8:11], v21 offset:{L_AST}")
    A(f"ds_read_b128 v[12:15], v21 offset:{L_AST+16}")
    A("s_waitcnt lgkmcnt(0)")
    A("v_max3_f32 v8, v8, v9, v10")
    A("v_max3_f32 v11, v11, v12, v13")
    A("v_max3_f32 v8, v8, v14, v15")
    A("v_max_f32 v6, v8, v11")
    A(f"v_mul_f32 v6, {LOG2E:#x}, v6")
    for k in range(S, S + 8):
        A(f"v_sub_f32 v{k}, v{k}, v6")
        A(f"v_exp_f32 v{k}, v{k}")
    for q in range(4):
        A(f"v_cvt_pk_bf16_f32 v{8+q}, v{S+2*q}, v{S+2*q+1}")
    A(f"v_add_f32 v7, v{S}, v{S+1}")
    A(f"v_add_f32 v6, v{S+2}, v{S+3}")
    for k in range(S + 4, S + 8, 2):
        A(f"v_add_f32 v7, v7, v{k}")
        A(f"v_add_f32 v6, v6, v{k+1}")
    A("v_add_f32 v7, v7, v6")
    A.bfly(7, 5, "v_add_f32", bits=(4, 5))
    A("s_mov_b64 exec, 0xff")
    A(f"ds_write_b32 v23, v7 offset:{L_AST+256}")
    A("s_mov_b64 exec, -1")
    A.signal(C_L)
    perm_prog(A, R2, R1)
    A.stamp(3)
    A.mfma(R0, 8, R1, True)
    slab_store(A, R0, L_A, 22)
    A.signal(C_A)
    A.wait_cnt(C_A, 8)
    O = R2
    for s in range(4):
        A(f"ds_read_b128 v[{O+4*s}:{O+4*s+3}], v20 offset:{L_A+SLAB*s}")
    A("s_waitcnt lgkmcnt(2)")
    for q in range(4):
        A(f"v_add_f32 v{O+q}, v{O+q}, v{O+4+q}")
    A("s_waitcnt lgkmcnt(0)")
    for q in range(4):
        A(f"v_add_f32 v{O+8+q}, v{O+8+q}, v{O+12+q}")
    for q in range(4):
        A(f"v_add_f32 v{O+q}, v{O+q}, v{O+8+q}")
    half_sum_pub(A, O, 19, T3)
    A.stamp(4)


def attn3_mid(A, S, DA):
    assert A.p.PK & 8
    for r in range(4):
        A(f"v_add_f32_dpp v{S+r}, v{DA[2]+r}, v{S+r} row_ror:8 row_mask:0xf bank_mask:0x3")
    for r in range(4):
        A(f"v_add_f32_dpp v{S+r}, v{DA[1]+r}, v{DA[3]+r} row_ror:8 row_mask:0xf bank_mask:0xc")
    for rr in range(2):
        for q in range(2):
            A(f"v_cvt_pk_bf16_f32 v{8+q}, v{S+2*q}, v{S+2*q+1}")
        for q in range(2):
            A(f"v_lshlrev_b32 v{S+2*q}, 16, v{8+q}")
            A(f"v_and_b32 v{S+2*q+1}, 0xffff0000, v{8+q}")
        if rr == 0:
            for k in (S, S + 2):
                A(f"v_pk_mul_f32 v[{k}:{k+1}], v[{k}:{k+1}], s[{S_K}:{S_K+1}]")
    A(f"v_max3_f32 v6, v{S}, v{S+1}, v{S+2}")
    A(f"v_max_f32 v6, v6, v{S+3}")
    A.bfly(6, 5, "v_max_f32", bits=(3, 4, 5))
    A("s_mov_b64 exec, 0xff")
    A(f"ds_write_b32 v23, v6 offset:{L_AST}")
    A("s_mov_b64 exec, -1")
    A.signal(C_MX)
    A(f"v_mul_f32 v16, {LOG2E | 0x80000000:#x}, v6")
    A(f"v_mul_f32 v17, {LOG2E | 0x80000000:#x}, v6")
    for k in (S, S + 2):
        A(f"v_pk_fma_f32 v[{k}:{k+1}], v[{k}:{k+1}], s[{S_V}:{S_V+1}], v[16:17]")
    for k in range(S, S + 4):
        A(f"v_exp_f32 v{k}, v{k}")
    A.wait_rd('m', C_MX, 8, [f"ds_read_b128 v[8:11], v21 offset:{L_AST}", f"ds_read_b128 v[12:15], v21 offset:{L_AST+16}"])
    A("s_waitcnt lgkmcnt(0)")
    A("v_max3_f32 v8, v8, v9, v10")
    A("v_max3_f32 v11, v11, v12, v13")
    A("v_max3_f32 v8, v8, v14, v15")
    A("v_max_f32 v8, v8, v11")
    A("v_sub_f32 v8, v6, v8")
    A(f"v_mul_f32 v8, {LOG2E:#x}, v8")
    A("v_exp_f32 v8, v8")
    for k in range(S, S + 4):
        A(f"v_mul_f32 v{k}, v{k}, v8")
    A.stamp(3)
    for q in range(2):
        A(f"v_cvt_pk_bf16_f32 v{16+q}, v{S+2*q}, v{S+2*q+1}")
    pair_mfma(A, R0, R2 + 24, R1)
    A(f"v_pk_add_f32 v[{S}:{S+1}], v[{S}:{S+1}], v[{S+2}:{S+3}]")
    A(f"v_add_f32 v7, v{S}, v{S+1}")


def attn2(A):
    p = A.p
    assert p.VQ == 8 and not p.QS
    A(f"s_mov_b32 s{S_K}, 0x3db504f3")
    A(f"s_mov_b32 s{S_K+1}, 0x3db504f3")
    A(f"s_mov_b32 s{S_V}, {LOG2E:#x}")
    A(f"s_mov_b32 s{S_V+1}, {LOG2E:#x}")
    perm_prog(A, R2, R1)
    zero8(A, R2 + 24)
    A.stamp(5)
    QF = R2
    A.wait_rd('q', E_Q, 4, [f"ds_read_b128 v[{QF+4*u}:{QF+4*u+3}], v7 offset:{L_QF+2048*u}" for u in range(2)])
    S = 24
    DA = [S, S + 4, R2 + 8, R2 + 12]
    for pp in range(2):
        A(f"s_waitcnt lgkmcnt({1-pp})")
        for t in (0, 2, 1, 3):
            c = "0" if pp == 0 else f"v[{DA[t]}:{DA[t]+3}]"
            A(f"v_mfma_f32_16x16x32_bf16 v[{DA[t]}:{DA[t]+3}], v[{R0+8*t+4*pp}:{R0+8*t+4*pp+3}], v[{QF+4*pp}:{QF+4*pp+3}], {c}")
    A.stamp(2)
    for t in range(2):
        for r in range(4):
            A(f"v_permlane32_swap_b32 v{DA[t]+r}, v{DA[t+2]+r}")
    if p.ATT == 3:
        attn3_mid(A, S, DA)
    else:
        for t in range(2):
            for r in range(4):
                A(f"v_add_f32_dpp v{DA[t]+r}, v{DA[t+2]+r}, v{DA[t]+r} row_ror:8 row_mask:0xf bank_mask:0xf")
        for rr in range(2):
            for q in range(4):
                A(f"v_cvt_pk_bf16_f32 v{8+q}, v{S+2*q}, v{S+2*q+1}")
            for q in range(4):
                A(f"v_lshlrev_b32 v{S+2*q}, 16, v{8+q}")
                A(f"v_and_b32 v{S+2*q+1}, 0xffff0000, v{8+q}")
            if rr == 0:
                for k in range(S, S + 8, 2):
                    A(f"v_pk_mul_f32 v[{k}:{k+1}], v[{k}:{k+1}], s[{S_K}:{S_K+1}]")
        A(f"v_max3_f32 v6, v{S}, v{S+1}, v{S+2}")
        A(f"v_max3_f32 v7, v{S+3}, v{S+4}, v{S+5}")
        A(f"v_max3_f32 v6, v6, v{S+6}, v{S+7}")
        A("v_max_f32 v6, v6, v7")
        A.bfly(6, 5, "v_max_f32", bits=(4, 5))
        A("s_mov_b64 exec, 0xff")
        A(f"ds_write_b32 v23, v6 offset:{L_AST}")
        A("s_mov_b64 exec, -1")
        A.signal(C_MX)
        A(f"v_mul_f32 v16, {LOG2E | 0x80000000:#x}, v6")
        A(f"v_mul_f32 v17, {LOG2E | 0x80000000:#x}, v6")
        for k in range(S, S + 8, 2):
            A(f"v_pk_fma_f32 v[{k}:{k+1}], v[{k}:{k+1}], s[{S_V}:{S_V+1}], v[16:17]")
        for k in range(S, S + 8):
            A(f"v_exp_f32 v{k}, v{k}")
        A.wait_rd('m', C_MX, 8, [f"ds_read_b128 v[8:11], v21 offset:{L_AST}", f"ds_read_b128 v[12:15], v21 offset:{L_AST+16}"])
        A("s_waitcnt lgkmcnt(0)")
        A("v_max3_f32 v8, v8, v9, v10")
        A("v_max3_f32 v11, v11, v12, v13")
        A("v_max3_f32 v8, v8, v14, v15")
        A("v_max_f32 v8, v8, v11")
        A("v_sub_f32 v8, v6, v8")
        A(f"v_mul_f32 v8, {LOG2E:#x}, v8")
        A("v_exp_f32 v16, v8")
        A("v_exp_f32 v17, v8")
        for k in range(S, S + 8, 2):
            A(f"v_pk_mul_f32 v[{k}:{k+1}], v[{k}:{k+1}], v[16:17]")
        if p.PK & 8:
            def cv(d, m):
                A(f"s_mov_b32 exec_lo, {m:#x}")
                A(f"s_mov_b32 exec_hi, {m:#x}")
                for q in range(4):
                    A(f"v_cvt_pk_bf16_f32 v{d+q}, v{S+2*q}, v{S+2*q+1}")
                A("s_mov_b64 exec, -1")
            A.stamp(3)
            split_mfma(A, R0, R2 + 24, R1, lambda: cv(R2 + 24, 0x00ff00ff),
                       lambda: [A(f"v_mov_b32_dpp v{R2+28+q}, v{R2+24+q} row_ror:8 row_mask:0xf bank_mask:0xf") for q in range(4)])
        else:
            for q in range(4):
                A(f"v_cvt_pk_bf16_f32 v{8+q}, v{S+2*q}, v{S+2*q+1}")
            A.stamp(3)
            slab_mfma(A, R0, 8, R1)
        A(f"v_pk_add_f32 v[{S}:{S+1}], v[{S}:{S+1}], v[{S+2}:{S+3}]")
        A(f"v_pk_add_f32 v[{S+4}:{S+5}], v[{S+4}:{S+5}], v[{S+6}:{S+7}]")
        A(f"v_pk_add_f32 v[{S}:{S+1}], v[{S}:{S+1}], v[{S+4}:{S+5}]")
        A(f"v_add_f32 v7, v{S}, v{S+1}")
    if p.ATT == 2:
        slab_store(A, R0, L_A, 22)
        A.signal(C_A)
    A.bfly(7, 6, "v_add_f32", bits=(3, 4, 5) if p.ATT == 3 else (4, 5))
    A("s_mov_b64 exec, 0xff")
    A(f"ds_write_b32 v23, v7 offset:{L_AST+256}")
    A("s_mov_b64 exec, -1")
    A.signal(C_L)
    if p.FS:
        A.stamp(6)
    if p.ATT != 2:
        slab_store(A, R0, L_A, 22)
        A.signal(C_A)
    if p.FS:
        A.stamp(8)
        A("s_waitcnt lgkmcnt(0)")
        Gen.stamp(A, 12)
        A.wait_cnt(C_A, 8)
        Gen.stamp(A, 13)
    O = R2
    A.wait_rd('a', C_A, 8, [f"ds_read_b128 v[{O+4*s}:{O+4*s+3}], v20 offset:{L_A+SLAB*s}" for s in range(4)])
    A("s_waitcnt lgkmcnt(2)")
    for q in (0, 2):
        A(f"v_pk_add_f32 v[{O+q}:{O+q+1}], v[{O+q}:{O+q+1}], v[{O+4+q}:{O+5+q}]")
    A("s_waitcnt lgkmcnt(0)")
    for q in (0, 2):
        A(f"v_pk_add_f32 v[{O+8+q}:{O+9+q}], v[{O+8+q}:{O+9+q}], v[{O+12+q}:{O+13+q}]")
    for q in (0, 2):
        A(f"v_pk_add_f32 v[{O+q}:{O+q+1}], v[{O+q}:{O+q+1}], v[{O+8+q}:{O+9+q}]")
    if p.FS:
        A.stamp(1)
    half_sum_pub(A, O, 19, T3)
    A.stamp(4)


def opd_base(A, dst, s_a):
    A(f"s_lshl_b32 s{dst}, s{SJ}, 2")
    A(f"s_lshr_b32 s{T1}, s{SR}, 2")
    A(f"s_add_u32 s{dst}, s{dst}, s{T1}")
    A(f"s_lshl_b32 s{dst}, s{dst}, 3")
    if s_a is not None:
        A(f"s_add_u32 s{dst}, s{dst}, s{s_a}")
    A(f"s_lshl_b32 s{dst}, s{dst}, 2")
    A(f"s_and_b32 s{T1}, s{SR}, 3")
    A(f"s_add_u32 s{dst}, s{dst}, s{T1}")
    A(f"s_lshl_b32 s{dst}, s{dst}, 9")
    A(f"s_add_u32 s{dst}, s{dst}, {WS_OPD}")


def diag2(A, acc):
    for t in range(4):
        for r in range(4):
            A(f"v_permlane32_swap_b32 v{acc+4*t+r}, v{acc+4*(t+4)+r}")
    for t in range(4):
        for r in range(4):
            x1, x2 = acc + 4 * t + r, acc + 4 * (t + 4) + r
            A(f"v_add_f32_dpp v{x1}, v{x2}, v{x1} row_ror:8 row_mask:0xf bank_mask:0xf")


def g_store(A, acc, va, lbase):
    A("s_mov_b32 exec_lo, 0x00ff00ff")
    A("s_mov_b32 exec_hi, 0x00ff00ff")
    for t in range(4):
        A(f"ds_write_b128 v{va}, v[{acc+4*t}:{acc+4*t+3}] offset:{lbase + 16*t}")
    A("s_mov_b64 exec, -1")


def g_read(A, d, vr, lbase):
    for s in range(4):
        A(f"ds_read_b128 v[{d+4*s}:{d+4*s+3}], v{vr} offset:{lbase + WSZ*s}")


def g_sum(A, d):
    for k in (0, 2):
        A(f"v_pk_add_f32 v[{d+k}:{d+k+1}], v[{d+k}:{d+k+1}], v[{d+4+k}:{d+5+k}]")
        A(f"v_pk_add_f32 v[{d+8+k}:{d+9+k}], v[{d+8+k}:{d+9+k}], v[{d+12+k}:{d+13+k}]")
    for k in (0, 2):
        A(f"v_pk_add_f32 v[{d+k}:{d+k+1}], v[{d+k}:{d+k+1}], v[{d+8+k}:{d+9+k}]")
    A(f"v_permlane32_swap_b32 v{d}, v{d+2}")
    A(f"v_permlane32_swap_b32 v{d+1}, v{d+3}")
    A(f"v_pk_add_f32 v[{d}:{d+1}], v[{d}:{d+1}], v[{d+2}:{d+3}]")
    A(f"v_permlane16_swap_b32 v{d}, v{d+1}")
    A(f"v_add_f32 v{d}, v{d}, v{d+1}")


def frag_fix(A, f):
    A(f"v_permlane32_swap_b32 v{f}, v{f+2}")
    A(f"v_permlane32_swap_b32 v{f+1}, v{f+3}")


def arrange_b(A):
    for t in range(4):
        for q in range(4):
            A(f"v_mov_b32 v{R1+4*t+q}, v{R0+4*t+q}")
    for t in range(4):
        for q in range(4):
            A(f"v_mov_b32_dpp v{R0+4*t+q}, v{R0+16+4*t+q} row_ror:8 row_mask:0xf bank_mask:0xc")
    for t in range(4):
        for q in range(4):
            A(f"v_mov_b32_dpp v{R0+16+4*t+q}, v{R1+4*t+q} row_ror:8 row_mask:0xf bank_mask:0x3")


def role_E2(A):
    p = A.p
    A.label("L_F2")
    A(f"s_cmp_ge_u32 s{SR}, 14")
    A("s_cbranch_scc1 L_LR")
    A.label("L_F2b")
    A(f"s_add_u32 s{T0}, s{SJ}, 3")
    A(f"s_and_b32 s{T0}, s{T0}, 7")
    A(f"s_lshr_b32 s{T1}, s{SR}, 1")
    A(f"s_add_u32 s{T0}, s{T0}, s{T1}")
    A(f"s_add_u32 s{T0}, s{T0}, 1")
    for _ in range(2):
        A(f"s_cmp_ge_u32 s{T0}, 7")
        A(f"s_cselect_b32 s{T1}, 7, 0")
        A(f"s_sub_u32 s{T0}, s{T0}, s{T1}")
    A(f"s_mul_i32 s68, s{SJ}, 7")
    A(f"s_add_u32 s68, s68, s{T0}")
    A(f"s_lshl_b32 s68, s68, 1")
    A(f"s_and_b32 s{T1}, s{SR}, 1")
    A(f"s_add_u32 s68, s68, s{T1}")
    A(f"s_and_b32 s69, s68, 1")
    A(f"s_cmp_eq_u32 s69, 1")
    A(f"s_cselect_b32 s{D1}, s{S_WU}, s{S_WG}")
    A(f"s_cselect_b32 s{D1+1}, s{S_WU+1}, s{S_WG+1}")
    A(f"s_mov_b32 s{D1+2}, 7340032")
    A(f"s_mov_b32 s{D1+3}, 0x20000")
    dp_voff(A, 7, 7168, 5)
    A(f"s_mul_i32 s{T3}, s{SW}, {64*7168}")
    A(f"s_lshr_b32 s{T1}, s68, 1")
    A(f"s_lshl_b32 s{T1}, s{T1}, 7")
    A(f"s_add_u32 s{T3}, s{T3}, s{T1}")
    A(f"s_cmp_ge_u32 s{SI}, 30")
    A("s_cbranch_scc1 L_PF")
    if p.GUE4:
        A(f"s_cmp_ge_u32 s{SW}, {p.GUE4}")
        A("s_cbranch_scc1 L_G4a")
        A.wait_cnt(E_QP, 8)
        A("s_branch L_G4b")
        A.label("L_G4a")
    A.wait_cnt(E_M, 2)
    A.wait_cnt(C_MI, 2)
    if p.GUE4:
        A.label("L_G4b")
    A.stamp(7)
    if p.GUW and p.GUX:
        A(f"s_cmp_ge_u32 s{SR}, 12")
        A("s_cbranch_scc1 L_GUs")
        A.loads(A.tile_loads(D1, 7, T3, 8 * 7168, R1), p.GUW)
        A("s_branch L_GUt")
        A.label("L_GUs")
        A.loads(A.tile_loads(D1, 7, T3, 8 * 7168, R1), None)
        A.label("L_GUt")
    else:
        A.loads(A.tile_loads(D1, 7, T3, 8 * 7168, R1), p.GUW)
    flag_addr(A, T5, 2, 2)
    hx_addr(A, 26, 5, "2")
    A(f"v_lshrrev_b32 v30, 3, v{VC}")
    A(f"v_and_b32 v31, 7, v{VC}")
    A(f"s_mov_b32 s{T0}, {-(WS_CB - WS_SB) - 1024:#x}")
    A(f"v_mul_lo_u32 v27, v30, s{T0}")
    A("v_add_u32 v27, v27, v26")
    A(f"v_add_u32 v27, {WS_CB - WS_SB}, v27")
    A(f"v_mul_u32_u24 v22, {OS}, v31")
    A(f"v_and_b32 v4, 1, v{VG}")
    A("v_lshl_add_u32 v22, v4, 7, v22")
    A("v_lshl_add_u32 v22, v30, 6, v22")
    A(f"v_lshrrev_b32 v4, 1, v{VG}")
    A(f"v_mul_u32_u24 v4, {8*SLAB}, v4")
    A(f"s_mul_i32 s{T0}, s{SW}, {WSZ}")
    A(f"v_add3_u32 v22, v22, v4, s{T0}")
    A(f"v_mul_u32_u24 v23, {4*WSZ}, v{VG}")
    A(f"v_lshl_add_u32 v23, v{VC}, 4, v23")
    A(f"s_mul_i32 s{T0}, s{SW}, {OS}")
    A(f"v_add_u32 v23, s{T0}, v23")
    A(f"v_add_u32 v28, {L_V}, v23")
    A(f"v_mul_u32_u24 v25, {OS}, v31")
    A("v_lshl_add_u32 v25, v30, 6, v25")
    A(f"s_lshl_b32 s{T0}, s{SW}, 2")
    A(f"s_add_u32 s{T0}, s{T0}, {L_ST2}")
    A(f"v_add_u32 v25, s{T0}, v25")
    A(f"v_lshl_add_u32 v4, v30, 2, v{VG}")
    A(f"v_mul_u32_u24 v29, {OS}, v4")
    A("v_lshl_add_u32 v29, v31, 5, v29")
    A("v_lshlrev_b32 v24, 5, v4")
    A("v_lshl_add_u32 v24, v31, 2, v24")
    A(f"s_lshl_b32 s67, s{SW}, 11")
    A(f"s_add_u32 s{T3}, s67, {WS_SB}")
    A(f"s_lshl_b32 s{T4}, s68, 11")
    A(f"s_lshl_b32 s{T1}, s{SW}, 8")
    A(f"s_add_u32 s{T4}, s{T4}, s{T1}")
    A(f"s_add_u32 s{T4}, s{T4}, {WS_ACT}")
    if p.SBS:
        A(f"s_cmp_lg_u32 s{SW}, 3")
        A("s_cbranch_scc1 L_GUw")
        A(f"s_and_b32 s{T2}, s{SJ}, 1")
        A(f"s_lshl_b32 s{T2}, s{T2}, 15")
        A(f"s_lshl_b32 s{T1}, s{SR}, 7")
        A(f"s_add_u32 s{T2}, s{T2}, s{T1}")
        A(f"s_add_u32 s{T2}, s{T2}, {WS_SB + 3*2048}")
        prepoll(A, T2, (0, 8 * 2048))
        A.signal(E_W2)
        A.label("L_GUw")

    def arrange(after, part=3, mid=None):
        if part & 1:
            perm_prog(A, R1, R0, after=after)
            A.stamp(12)
        if not part & 2:
            return
        for t in range(4):
            for q in range(4):
                A(f"v_mov_b32 v{R1+4*t+q}, v{R0+4*t+q}")
        if mid:
            mid()
        for t in range(4):
            for q in range(4):
                A(f"v_mov_b32_dpp v{R0+4*t+q}, v{R0+16+4*t+q} row_ror:8 row_mask:0xf bank_mask:0xc")
        for t in range(4):
            for q in range(4):
                A(f"v_mov_b32_dpp v{R0+16+4*t+q}, v{R1+4*t+q} row_ror:8 row_mask:0xf bank_mask:0x3")

    def mm(acc, a0, a1):
        for t in range(4):
            A(f"v_mfma_f32_16x16x32_bf16 v[{acc+4*t}:{acc+4*t+3}], v[{a0}:{a0+3}], v[{R0+4*t}:{R0+4*t+3}], 0")
        return [f"v_mfma_f32_16x16x32_bf16 v[{acc+4*t}:{acc+4*t+3}], v[{a1}:{a1+3}], v[{R0+16+4*t}:{R0+16+4*t+3}], v[{acc+4*t}:{acc+4*t+3}]"
                for t in range(4)]
    C1, ACC, X, ONE = R2, R2 + 16, R1 + 16, R1 + 24
    ll = [(C1 + 4 * k, 27, 512 * k, None) for k in range(4)]
    xl = [(X, 26, 0, None), (X + 4, 26, 512, None)]
    if p.XE2:
        A.wait_cnt(E_W2, 1)
        A.poll(ll, T3, 'b', hook=lambda: arrange(4, 1))
        A(f"v_mov_b32 v4, {L_CNT+E_W3}")
        A("ds_read_b32 v5, v4")
        A(f"s_add_u32 s{T3}, s67, {WS_X1}")

        def early():
            A("s_waitcnt lgkmcnt(0)")
            A("v_readfirstlane_b32 s12, v5")
            A("s_cmp_eq_u32 s12, 0")
            A("s_cbranch_scc1 L_GUn")
            A.touch(xl, T3)
            A.label("L_GUn")
        arrange(0, 2, early)
    elif p.SBS == 2:
        A.wait_cnt(E_W2, 1)
        A.poll(ll, T3, 'b', hook=lambda: arrange(4))
    else:
        arrange(0)
        if p.SBS:
            A.wait_cnt(E_W2, 1)
        A.poll(ll, T3, 'b')
    A.stamp(8)
    A.pack8(C1, 16)
    A.pack8(C1 + 8, 8)
    frag_fix(A, 16)
    frag_fix(A, 8)
    for m in mm(ACC, 16, 8):
        A(m)
    for q in range(8):
        A(f"v_mov_b32_dpp v{C1+q}, v{C1+8+q} row_ror:8 row_mask:0xf bank_mask:0xc")
    for q in range(4):
        A(f"v_mov_b32 v{ONE+q}, 0x3f803f80")
    for t in range(4):
        A(f"ds_write_b128 v22, v[{ACC+4*t}:{ACC+4*t+3}] offset:{L_A + 16*t}")
    A.signal(C_MK)
    if p.PK & 4:
        A(f"v_lshrrev_b32 v4, 1, v{VG}")
        A(f"v_mul_u32_u24 v4, {8*SLAB-32}, v4")
        A("v_sub_u32 v22, v22, v4")
        for r in (1, 2, 3):
            A(f"s_mov_b32 s{4+2*r}, {0x11111111 << r:#x}")
            A(f"s_mov_b32 s{5+2*r}, {0x11111111 << r:#x}")
    A(f"s_add_u32 s{T3}, s67, {WS_X1}")
    A("v_mov_b32 v21, 0")
    A.stamp(13)
    def xgate():
        A(f"s_cmp_lg_u32 s{SW}, {p.X1W}")
        A("s_cbranch_scc1 L_GUx")
        A(f"s_lshl_b32 s{T2}, s{SJ}, 5")
        A(f"s_add_u32 s{T2}, s{T2}, s{SR}")
        A(f"s_lshl_b32 s{T2}, s{T2}, 7")
        A(f"s_add_u32 s{T2}, s{T2}, {WS_X1}")
        if p.X1S == 3:
            vpoll(A, T2, (0,))
        else:
            prepoll(A, T2, (0,))
        A.signal(E_W3)
        A.label("L_GUx")
        if p.XS:
            A.wait_cnt(E_W3, 1)
    if p.X1S in (1, 3) and not p.XS:
        xgate()

    def uv_fin():
        A(f"s_cmp_ge_u32 s{SW}, 8")
        A("s_cbranch_scc1 L_GUh")
        A.wait_cnt(C_MK, 16)
        g_read(A, R1, 23, L_A)
        g_read(A, ACC, 28, 0)
        A("s_waitcnt lgkmcnt(4)")
        g_sum(A, R1)
        A("s_waitcnt lgkmcnt(0)")
        g_sum(A, ACC)
        A(f"v_mov_b32 v30, v{R1}")
        A(f"v_mov_b32 v31, v{ACC}")
        A.label("L_GUh")
        A(f"s_mov_b32 s{SCNT}, 0")
    xl = [(X, 26, 0, None), (X + 4, 26, 512, None)]
    if p.XS:
        A.pollx('X', (R2 + 8, R1 + 8), xl, T3, 'b', hook=uv_fin, gate=xgate)
        A.signal(E_W3)
    elif p.UVH:
        if p.X1S == 2:
            A.wait_cnt(C_MK, 16)
        elif p.X1S:
            if p.XE2:
                A("s_cmp_lg_u32 s12, 0")
                A("s_cbranch_scc1 L_GUe")
            A.wait_cnt(E_W3, 1)
        A.pollx('X', (R2 + 8, R1 + 8), xl, T3, 'b', hook=uv_fin, ent="L_GUe" if p.XE2 else None)
    else:
        uv_fin()
        if p.X1S:
            A.wait_cnt(E_W3, 1)
        A.poll(xl, T3, 'b')
    A.stamp(9)
    for k in range(0, 8, 2):
        A(f"v_pk_mul_f32 v[{8+k}:{9+k}], v[{X+k}:{X+k+1}], v[{C1+k}:{C1+k+1}]")
    for q in range(4):
        A(f"v_cvt_pk_bf16_f32 v{16+q}, v{8+2*q}, v{9+2*q}")
    A.pack8(X, 12)
    frag_fix(A, 16)
    DQ, DS = R1, R1 + 4
    A(f"v_mfma_f32_16x16x32_bf16 v[{DQ}:{DQ+3}], v[12:15], v[12:15], 0")
    A(f"v_mfma_f32_16x16x32_bf16 v[{DS}:{DS+3}], v[12:15], v[{ONE}:{ONE+3}], 0")
    for q in range(4):
        A(f"v_mov_b32_dpp v{8+q}, v{16+q} row_ror:8 row_mask:0xf bank_mask:0xf")
    m2 = mm(ACC, 16, 8)
    if p.PK & 4:
        for t in (0, 2, 1, 3):
            A(m2[t])
        for r in (1, 2, 3):
            for z in (DS, DQ):
                A(f"v_cndmask_b32 v{z}, v{z}, v{z+r}, s[{4+2*r}:{5+2*r}]")
        A("s_mov_b32 exec_lo, 0x00f0000f")
        A("s_mov_b32 exec_hi, 0xf0000f00")
        A(f"ds_write2_b32 v25, v{DS}, v{DQ} offset0:0 offset1:32")
        A("s_mov_b64 exec, -1")
        half_store(A, ACC, 22, L_RED, 4)
    else:
        for m in m2:
            A(m)
        for r in range(4):
            A(f"s_mov_b32 exec_lo, {(1 << r) | (1 << (20 + r)):#x}")
            A(f"s_mov_b32 exec_hi, {(1 << (8 + r)) | (1 << (28 + r)):#x}")
            A(f"ds_write2_b32 v25, v{DS+r}, v{DQ+r} offset0:0 offset1:32")
        A("s_mov_b32 exec_lo, -1")
        A("s_mov_b32 exec_hi, 0")
        for t in range(4):
            A(f"ds_write_b128 v22, v[{ACC+4*t}:{ACC+4*t+3}] offset:{L_RED + 16*t}")
        A("s_mov_b64 exec, -1")
    A.stamp(10)
    flag_store(A, SW, 15, T5, 21)
    A("s_waitcnt lgkmcnt(0)")
    A("s_barrier")
    A(f"s_cmp_ge_u32 s{SW}, 8")
    A("s_cbranch_scc1 L_fin")
    if p.FS:
        A.stamp(4)
        A("s_waitcnt lgkmcnt(0)")
    A(f"ds_read_b128 v[8:11], v29 offset:{L_ST2}")
    A(f"ds_read_b128 v[12:15], v29 offset:{L_ST2+16}")
    g_read(A, R0, 23, L_RED)
    d = R0
    ch1 = ["v_pk_add_f32 v[8:9], v[8:9], v[10:11]",
           "v_pk_add_f32 v[12:13], v[12:13], v[14:15]",
           "v_pk_add_f32 v[8:9], v[8:9], v[12:13]",
           "v_add_f32 v8, v8, v9",
           "v_add_f32_dpp v8, v8, v8 quad_perm:[1,0,3,2] row_mask:0xf bank_mask:0xf",
           "v_add_f32_dpp v8, v8, v8 quad_perm:[2,3,0,1] row_mask:0xf bank_mask:0xf",
           "v_mul_f32 v9, 0x3a800000, v8",
           "v_mul_f32 v10, 0x3a800000, v8",
           "v_mov_b32_dpp v9, v10 row_half_mirror row_mask:0xf bank_mask:0xa",
           "v_mul_f32_dpp v10, v8, v20 row_half_mirror row_mask:0xf bank_mask:0x5",
           "v_fma_f32 v10, -v9, v9, v10",
           "v_max_f32 v10, 0, v10",
           "v_cvt_pk_bf16_f32 v7, v9, v10",
           "v_and_b32 v10, 0xffff0000, v7",
           "v_lshlrev_b32 v9, 16, v7",
           "v_add_f32 v10, 0x3727c5ac, v10",
           "v_cvt_pk_bf16_f32 v10, v10, v10",
           "v_and_b32 v10, 0xffff0000, v10",
           "v_sqrt_f32 v10, v10",
           "v_cvt_pk_bf16_f32 v10, v10, v10",
           "v_and_b32 v10, 0xffff0000, v10",
           "v_rcp_f32 v10, v10"]
    ch2 = [f"v_pk_add_f32 v[{d}:{d+1}], v[{d}:{d+1}], v[{d+4}:{d+5}]",
           f"v_pk_add_f32 v[{d+2}:{d+3}], v[{d+2}:{d+3}], v[{d+6}:{d+7}]",
           f"v_pk_add_f32 v[{d+8}:{d+9}], v[{d+8}:{d+9}], v[{d+12}:{d+13}]",
           f"v_pk_add_f32 v[{d+10}:{d+11}], v[{d+10}:{d+11}], v[{d+14}:{d+15}]",
           f"v_pk_add_f32 v[{d}:{d+1}], v[{d}:{d+1}], v[{d+8}:{d+9}]",
           f"v_pk_add_f32 v[{d+2}:{d+3}], v[{d+2}:{d+3}], v[{d+10}:{d+11}]",
           f"v_permlane32_swap_b32 v{d}, v{d+2}",
           f"v_permlane32_swap_b32 v{d+1}, v{d+3}",
           f"v_pk_add_f32 v[{d}:{d+1}], v[{d}:{d+1}], v[{d+2}:{d+3}]",
           f"v_permlane16_swap_b32 v{d}, v{d+1}",
           f"v_add_f32 v{d}, v{d}, v{d+1}",
           f"v_fma_f32 v{d}, -v9, v30, v{d}"]
    A("v_mov_b32 v20, 0x3a800000")
    A("s_waitcnt lgkmcnt(4)")
    for x in ch1[:6]:
        A(x)
    A("s_waitcnt lgkmcnt(0)")
    if p.FS:
        A.stamp(5)
    r1, r2 = ch1[6:], list(ch2)
    while r1 or r2:
        if r1:
            A(r1.pop(0))
        if r2 and not (len(r2) == 1 and len(r1) > 7):
            A(r2.pop(0))
    A(f"v_fma_f32 v{R0}, v{R0}, v10, v31")
    A(f"s_cmp_eq_u32 s69, 1")
    A("s_cbranch_scc1 L_GUu")
    A.rnd(R0)
    A.silu(R0, R0 + 2)
    A.label("L_GUu")
    if p.FS:
        A.stamp(6)
    A.rnd_tag(R0)
    A.quad_gather(R0, R0 + 4)
    A("s_mov_b32 exec_lo, 0x11111111")
    A("s_mov_b32 exec_hi, 0x11111111")
    A.pubg(R0 + 4, 24, T4)
    A("s_mov_b64 exec, -1")
    A.stamp(11)
    A("s_branch L_fin")


def head_FQ(A):
    p = A.p
    A.label("L_FQ")
    dp_voff(A, 7, 8192, 5)
    A(f"s_lshr_b32 s68, s{SJ}, 1")
    A(f"s_lshl_b32 s68, s68, 4")
    A(f"s_add_u32 s68, s68, s{SR}")
    A(f"s_and_b32 s67, s{SJ}, 1")
    A(f"s_lshl_b32 s{T2}, s67, 3")
    A(f"s_add_u32 s{T2}, s{T2}, s{SW}")
    A(f"s_lshl_b32 s{T3}, s{T2}, 19")
    A(f"s_lshl_b32 s{T1}, s68, 7")
    A(f"s_add_u32 s{T3}, s{T3}, s{T1}")
    A("s_waitcnt lgkmcnt(0)")
    A.srd(D1, S_WQ, 8388608)
    ld = A.tile_loads(D1, 7, T3, 8 * 8192, R1)
    if p.XP != 1:
        A.loads(ld[:p.WQ0], None)
    A(f"s_load_dword s{SEP}, s[{S_WSP}:{S_WSP+1}], 0")
    A("s_barrier")
    if p.XP == 1:
        A.srd(WS, S_WSP, 0x10000000)
        A("s_branch L_fin")
    A("s_branch L_FQ2")


def role_FQ(A):
    p = A.p
    A.label("L_FQ2")
    ld = A.tile_loads(D1, 7, T3, 8 * 8192, R1)
    A.srd(WS, S_WSP, 0x10000000)
    if p.WQG:
        A.wait_cnt(E_PH, 1)
    elif p.WQ0 < 8:
        A(f"s_and_b32 s{T0}, s{SR}, 7")
        A(f"s_cmp_eq_u32 s{T0}, {3 if p.WQS == 8 else 8}")
        A("s_cbranch_scc1 L_FQ3")
        A("s_waitcnt vmcnt(0)" if p.WQM == 'v' else "s_waitcnt lgkmcnt(0)")
        A.label("L_FQ3")
    if p.WQH < 8:
        A(f"s_cmp_lt_u32 s{SW}, {p.WQH}")
        A("s_cbranch_scc1 L_FQ4")
        A.wait_cnt(E_H, 2)
        A.label("L_FQ4")
    A.loads(ld[p.WQ0:], None)
    A.init_sync()
    hx_addr(A, 26, 5, "H")
    A.tagm('q')
    if p.FQA:
        A(f"v_and_b32 v4, 7, v{VC}")
        A("v_mul_u32_u24 v22, 144, v4")
        A(f"v_lshrrev_b32 v4, 3, v{VC}")
        A("v_lshl_add_u32 v22, v4, 6, v22")
        A(f"v_and_b32 v4, 1, v{VG}")
        A("v_mul_u32_u24 v4, 1152, v4")
        A(f"s_mul_i32 s{T1}, s{SW}, 2304")
        A(f"v_add3_u32 v22, v22, v4, s{T1}")
        if p.PK & 2:
            A(f"v_lshrrev_b32 v4, 1, v{VG}")
            A("v_lshl_add_u32 v22, v4, 5, v22")
        A(f"v_lshrrev_b32 v4, 3, v{VL}")
        A("v_mul_u32_u24 v23, 144, v4")
        A(f"v_and_b32 v4, 7, v{VL}")
        A("v_lshl_add_u32 v23, v4, 4, v23")
        A(f"s_lshr_b32 s{T1}, s{SW}, 2")
        A(f"s_mul_i32 s{T1}, s{T1}, 1152")
        A(f"s_and_b32 s{T0}, s{SW}, 3")
        A(f"s_lshl_b32 s{T0}, s{T0}, 2")
        A(f"s_add_u32 s{T1}, s{T1}, s{T0}")
        A(f"s_add_u32 s{T1}, s{T1}, {L_RED}")
        A(f"v_add_u32 v23, s{T1}, v23")
    else:
        red_addr(A, 22, 23, 2)
    A(f"s_lshl_b32 s{T3}, s{T2}, 11")
    A(f"s_add_u32 s{T3}, s{T3}, {WS_H}")
    A(f"s_lshl_b32 s{T4}, s67, 17")
    A(f"s_lshl_b32 s{T1}, s{SW}, 14")
    A(f"s_add_u32 s{T4}, s{T4}, s{T1}")
    A(f"s_lshl_b32 s{T1}, s68, 8")
    A(f"s_add_u32 s{T4}, s{T4}, s{T1}")
    A(f"s_add_u32 s{T4}, s{T4}, {WS_Q}")
    A(f"v_lshlrev_b32 v24, 2, v{VL}" if p.FQA else f"v_lshlrev_b32 v24, 4, v{VC}")
    perm_prog(A, R1, R0)
    A.stamp(1)
    if p.FQA:
        arrange_b(A)
    if p.HG:
        A.wait_cnt(E_H, 2)
    else:
        A.wait_cnt(E_PH, 1)
    if p.HG >= 2:
        A(f"s_add_u32 s{T0}, s{T3}, {7*128}")
        vpoll(A, T0, (0,) if p.HG == 2 else (0, 8 * 128))
    hx_gather(A, 26, "H", 2)
    if p.FQA:
        for t in range(4):
            A(f"v_mfma_f32_16x16x32_bf16 v[{R2+4*t}:{R2+4*t+3}], v[16:19], v[{R0+4*t}:{R0+4*t+3}], 0")
            A(f"v_mov_b32_dpp v{8+t}, v{16+t} row_ror:8 row_mask:0xf bank_mask:0xf")
        for t in ((0, 2, 1, 3) if p.PK & 2 else range(4)):
            A(f"v_mfma_f32_16x16x32_bf16 v[{R2+4*t}:{R2+4*t+3}], v[8:11], v[{R0+16+4*t}:{R0+16+4*t+3}], v[{R2+4*t}:{R2+4*t+3}]")
        half_store(A, R2, 22, L_RED, 2)
        A.signal(C_G)
        A.wait_rd('g', C_G, 8, [f"ds_read2st64_b32 v[{R0+2*k}:{R0+2*k+1}], v23 offset0:{18*k} offset1:{18*k+9}" for k in range(4)])
        A("s_waitcnt lgkmcnt(2)")
        A(f"v_pk_add_f32 v[{R0}:{R0+1}], v[{R0}:{R0+1}], v[{R0+2}:{R0+3}]")
        A("s_waitcnt lgkmcnt(0)")
        A(f"v_pk_add_f32 v[{R0+4}:{R0+5}], v[{R0+4}:{R0+5}], v[{R0+6}:{R0+7}]")
        A(f"v_pk_add_f32 v[{R0}:{R0+1}], v[{R0}:{R0+1}], v[{R0+4}:{R0+5}]")
        A(f"v_add_f32 v{R0+4}, v{R0}, v{R0+1}")
        A.tagf((R0 + 4,))
        A.quad_gather(R0 + 4, R0)
        A("s_mov_b32 exec_lo, 0x11111111")
        A("s_mov_b32 exec_hi, 0x11111111")
    else:
        A.mfma(R2, 16, R0, True)
        A.diag_add(R2)
        red_store(A, 22, C_G)
        A.wait_cnt(C_G, 8)
        red_fin(A, 23, 2)
        A.tagf((R0,))
        regather(A, R0)
        A("s_mov_b64 exec, 0xffff")
    A.pubg(R0, 24, T4)
    A("s_mov_b64 exec, -1")
    A.signal(E_QP)
    A.stamp(3)
    A("s_branch L_F2")


def role_WO(A):
    p = A.p
    A.label("L_WO")
    A.srd(D2, S_WO, 8388608)
    A(f"s_lshl_b32 s67, s{SR}, 1")
    A(f"s_lshr_b32 s{T1}, s{SW}, 2")
    A(f"s_add_u32 s67, s67, s{T1}")
    A(f"s_and_b32 s68, s{SW}, 3")
    A(f"s_lshr_b32 s{T0}, s67, 2")
    A(f"s_lshl_b32 s{T0}, s{T0}, 9")
    A(f"s_and_b32 s{T1}, s67, 3")
    A(f"s_lshl_b32 s{T1}, s{T1}, 5")
    A(f"s_add_u32 s{T0}, s{T0}, s{T1}")
    A(f"s_lshl_b32 s{T1}, s68, 3")
    A(f"s_add_u32 s{T0}, s{T0}, s{T1}")
    A(f"s_lshl_b32 s{T2}, s{T0}, 11")
    A(f"s_lshl_b32 s{T1}, s{SJ}, 8")
    A(f"s_add_u32 s{T2}, s{T2}, s{T1}")
    A(f"v_lshlrev_b32 v25, 12, v{VG}")
    A(f"v_lshl_add_u32 v25, v{VC}, 4, v25")
    A(f"s_lshr_b32 s{T0}, s{SW}, 1")
    A(f"s_and_b32 s{T0}, s{T0}, 1")
    A(f"s_lshl_b32 s{SR32}, s{SR}, 1")
    A(f"s_add_u32 s{SR32}, s{SR32}, s{T0}")
    A(f"s_lshl_b32 s{T5}, s{SJ}, 17")
    A(f"s_lshl_b32 s{T1}, s{SR32}, 12")
    A(f"s_add_u32 s{T5}, s{T5}, s{T1}")
    A(f"s_add_u32 s{T5}, s{T5}, {WS_MP + (1 << 20)}")
    A(f"v_lshlrev_b32 v30, 4, v{VL}")

    def warm():
        A(f"s_sub_u32 s{T0}, s{SW}, 1")
        A(f"s_cmp_ge_u32 s{T0}, 2")
        A("s_cbranch_scc1 L_WO1")
        if p.TXW == 1:
            A.wait_cnt(E_V1, 8)
        A.touch([(R0 + 4 * k, 30, 1024 * k, None) for k in range(4)], T5)
        for n, reg in enumerate((WS_XP, WS_YP)):
            A(f"s_add_u32 s{T0}, s{T5}, {reg - WS_MP - (1 << 20)}")
            A.touch([(R0 + 16 + 8 * n + 4 * k, 30, 1024 * k, None) for k in range(2)], T0)
        A.label("L_WO1")
    if p.TXW < 2:
        warm()
    A(f"s_mov_b32 s{T1}, {p.WOM}")
    A(f"s_bitcmp1_b32 s{T1}, s{SW}")
    A(f"s_cselect_b32 s{T0}, {L_CNT+E_Q}, {L_CNT+E_OC}")
    A(f"s_cselect_b32 s{T1}, 4, 1")
    if p.WOV:
        A(f"s_mov_b32 s{T3}, {p.WOV}")
        A(f"s_bitcmp1_b32 s{T3}, s{SW}")
        A(f"s_cselect_b32 s{T0}, {L_CNT+E_V1}, s{T0}")
        A(f"s_cselect_b32 s{T1}, 8, s{T1}")
    A.wait_var(T0, T1)
    if p.TXW == 2:
        warm()
    A.stamp(7)
    rows = [(r & 3) * 128 + (r >> 2) for r in range(8)]
    A.loads(A.tile_loads(D2, 25, T2, 2048, R1, rows=rows), None)
    if p.OCF:
        assert p.WOM & 0x50 == 0x50
        A(f"s_cmp_eq_u32 s{SW}, 4")
        A("s_cbranch_scc1 L_OC")
        A(f"s_cmp_eq_u32 s{SW}, 6")
        A("s_cbranch_scc1 L_ESst")
        A.label("L_WO2")
    A(f"s_lshl_b32 s{T3}, s67, 9")
    A(f"s_lshl_b32 s{T0}, s68, 7")
    A(f"s_add_u32 s{T3}, s{T3}, s{T0}")
    A(f"s_add_u32 s{T3}, s{T3}, {WS_O}")
    t128_prep(A, L_B, WS_XP, SW)
    A.tagm('x')
    A(f"v_and_b32 v6, 7, v{VC}")
    A("v_lshlrev_b32 v6, 14, v6")
    A(f"v_lshl_add_u32 v6, v{VG}, 5, v6")
    half16(A, 6, "O")
    A.srd(D1, S_X, 16384)
    A.srd(D3, S_OUT, 16384)
    red_elem_prep(A, D1, vx=27, va=28, vp=29)
    A(f"s_add_u32 s{T4}, s{T4}, {WS_X1}")
    zero8(A, R2 + 24)
    A.get_mode()
    def wperm(x):
        if p.OCF:
            A(f"s_cmp_lg_u32 s{SW}, 6")
            A("s_cbranch_scc1 L_WO3")
            A(f"s_waitcnt vmcnt({x})")
            A.label("L_WO3")
        perm_prog(A, R1, R0, after=1 + x)
        A.stamp(5)
    if p.OT < 2:
        wperm(0)
    A.wait_cnt(E_OC, 1)

    def warm2(base, reg):
        A.touch([(R2 + 4 * k, 30, base + 1024 * k, None) for k in range(2)], T5)
        A(f"s_add_u32 s{T0}, s{T5}, {reg - WS_MP - (1 << 20)}")
        A.touch([(R2 + 8 + 4 * k, 30, 1024 * k, None) for k in range(2)], T0)
    def owarm():
        if p.OT == 2:
            wperm(1)
        A(f"s_sub_u32 s{T0}, s{SW}, 1")
        A(f"s_cmp_ge_u32 s{T0}, 2")
        A("s_cbranch_scc1 L_WO1")
        warm2(0, WS_XP)
        if p.OT:
            A("s_waitcnt vmcnt(4)")
            A("s_branch L_WO1b")
        A.label("L_WO1")
        if p.OT:
            A("s_waitcnt vmcnt(0)")
            A.label("L_WO1b")
    if p.OT:
        A.pollx('O', (R2 + 16, R2 + 20), [(8, 6, 0, None)], T3, 'b', hook=owarm, skipw=True)
    else:
        if p.TXW == 4:
            owarm()
        A.pollx('O', (R2 + 16, R2 + 20), [(8, 6, 0, None)], T3, 'b')
    A.stamp(6)
    for q in range(2):
        A(f"v_perm_b32 v{16+q}, v{9+2*q}, v{8+2*q}, s{SHI}")
    pair_mfma(A, R1, R2 + 24, R0)
    slab_store(A, R1, L_B, 22)
    t128_fin(A, L_B)
    if p.RG:
        A.signal(E_WO)
    A.stamp(8)
    A(f"s_cmp_gt_u32 s{SW}, 2")
    A("s_cbranch_scc1 L_fin")
    A(f"s_cmp_lg_u32 s{SW}, 0")
    A("s_cbranch_scc1 L_RX")
    A(f"s_cmp_ge_u32 s{SR}, 14")
    A(f"s_cselect_b32 s{T1}, 16, 0")
    A(f"s_sub_u32 s{T1}, s2, s{T1}")
    A(f"s_add_u32 s{T1}, s{T1}, 128")
    flag_addr(A, T3, 2, T1)
    if p.SENT:
        prepoll(A, T3, (0,))
    A.signal(E_PA)
    A.stamp(9)
    A("s_branch L_fin")
    A.label("L_RX")
    Z = R2

    def red(cls, base, region, st):
        ex = region - (WS_MP + (1 << 20))
        A.poll([(Z, 30, base, None), (Z + 4, 30, base + 1024, None), (Z + 8, 30, 0, ex), (Z + 12, 30, 1024, ex)], T5, cls)
        A.stamp(st)
        for h in (0, 8):
            for q in (0, 2):
                A(f"v_pk_add_f32 v[{Z+h+q}:{Z+h+q+1}], v[{Z+h+q}:{Z+h+q+1}], v[{Z+h+4+q}:{Z+h+5+q}]")
        A.packed_red2(Z, Z + 8)
        A.rnd2(Z, Z + 2, 4)
        A(f"v_mul_f32 v{Z}, v{Z}, v{Z+2}")
        A.rnd(Z)
        A(f"v_add_f32 v27, v27, v{Z}")
    A("v_lshlrev_b32 v27, 16, v27")
    if p.RG:
        A.wait_cnt(E_WO, 8)
    red('x', 0, WS_XP, 9)
    A.rnd_tag(27)
    A.quad_gather(27, 8)
    set_exec64(A, EX_V)
    A.pubg(8, 29, T4)
    A("s_mov_b64 exec, -1")
    if p.TXW == 4:
        warm2(2048, WS_YP)
    A.signal(E_X1)
    A.stamp(10)
    A("v_and_b32 v27, 0xffff0000, v27")
    A("s_barrier")
    if p.RG:
        A.wait_cnt(E_WD, 8)
    red('y', 2048, WS_YP, 11)
    A("v_cvt_pk_bf16_f32 v27, v27, v27")
    A("s_mov_b32 exec_lo, 0x00ff00ff")
    A("s_mov_b32 exec_hi, 0x00ff00ff")
    A(f"buffer_store_short v27, v28, s[{D3}:{D3+3}], s67 offen")
    A("s_mov_b64 exec, -1")
    A.stamp(13)
    A("s_cmp_lg_u32 s2, 0")
    A("s_cbranch_scc1 L_fin")
    A(f"s_cmp_lg_u32 s{SW}, 1")
    A("s_cbranch_scc1 L_fin")
    A(f"s_add_u32 s{T0}, s{SEP}, 1")
    A(f"v_mov_b32 v4, s{T0}")
    A("v_mov_b32 v5, 0")
    A("s_mov_b64 exec, 1")
    A(f"buffer_store_dword v4, v5, s[{WS}:{WS+3}], 0 offen sc1")
    A("s_mov_b64 exec, -1")
    A("s_branch L_fin")


def role_WD(A):
    p = A.p
    A(f"s_cmp_eq_u32 s{SW}, 15")
    A("s_cbranch_scc1 L_GB")
    A(f"s_sub_u32 s68, s{SW}, 8")
    t128_prep(A, L_A, WS_YP, 68)
    A.tagm('y')
    A.srd(D1, S_WD, 7340032)
    A(f"v_lshlrev_b32 v7, 14, v{VG}")
    A(f"v_lshl_add_u32 v7, v{VC}, 4, v7")
    A(f"s_mul_i32 s{T0}, s{SR}, 7")
    A(f"s_add_u32 s{T0}, s{T0}, s68")
    A(f"s_lshl_b32 s{T4}, s{T0}, 16")
    A(f"s_lshl_b32 s{T1}, s{SJ}, 8")
    A(f"s_add_u32 s{T4}, s{T4}, s{T1}")
    if p.ORW:
        A(f"s_mov_b32 s{T4}, s{T1}")
    A(f"v_and_b32 v6, 7, v{VC}")
    A("v_lshlrev_b32 v6, 5, v6")
    A(f"v_lshl_add_u32 v6, v{VG}, 8, v6")
    half16(A, 6, "A")
    A(f"s_lshr_b32 s{T3}, s{T0}, 1")
    A(f"s_lshl_b32 s{T3}, s{T3}, 12")
    A(f"s_and_b32 s{T1}, s{T0}, 1")
    A(f"s_lshl_b32 s{T1}, s{T1}, 10")
    A(f"s_add_u32 s{T3}, s{T3}, s{T1}")
    A(f"s_add_u32 s{T3}, s{T3}, {WS_ACT}")
    zero8(A, R2 + 24)
    if p.WDE:
        A(f"s_cmp_ge_u32 s68, {p.WDE}")
        A("s_cbranch_scc1 L_WD1")
        A.wait_cnt(E_OC, 1)
        A.stamp(7)
        A.loads(A.tile_loads(D1, 7, T4, 2048, R1), None)
        A("s_barrier")
        A("s_branch L_WD2")
        A.label("L_WD1")
    A("s_barrier")
    if p.GBF:
        A.wait_cnt(C_MI2, 1)
    else:
        A.wait_cnt(E_X1, p.WDG)
    A.stamp(7)
    A.loads(A.tile_loads(D1, 7, T4, 2048, R1), None)
    if p.WDE:
        A.label("L_WD2")
    perm_prog(A, R1, R0)
    A.stamp(9)
    A.wait_cnt(E_PA, 1)
    A.pollx('A', (R2 + 16, R1 + 16, R1 + 24)[:p.NS], [(R2, 6, 0, None), (R2 + 8, 6, 2048, None)], T3, 'b')
    A.stamp(10)
    for q in (0, 2):
        A(f"v_pk_mul_f32 v[{R2+q}:{R2+q+1}], v[{R2+q}:{R2+q+1}], v[{R2+8+q}:{R2+9+q}]")
    for q in range(2):
        A(f"v_cvt_pk_bf16_f32 v{16+q}, v{R2+2*q}, v{R2+2*q+1}")
    pair_mfma(A, R1, R2 + 24, R0)
    slab_store(A, R1, L_A, 22)
    A.label("L_WDf")
    t128_fin(A, L_A)
    if p.RG:
        A.signal(E_WD)
    A.stamp(11)
    A("s_branch L_fin")
    A.label("L_GB")
    G2.c_load(A)
    A.srd(D1, S_WM, 12582912)
    A(f"s_mov_b32 s{T1}, 5")
    A(f"s_mov_b32 s{T2}, 1")
    m_tile_off(A, T1, None)
    if p.ORW == 2:
        A(f"s_lshl_b32 s67, s{SJ}, 8")
    m_bases(A, T2, T2, None)
    A("s_add_u32 s69, s68, 0x10000")
    A.d64_voff(7, 12288, 5)
    A("v_add_u32 v27, 128, v7")
    A.tagm('n')
    m_vregs(A)
    if p.GBE:
        A.wait_cnt(E_OC, 1)
        A.stamp(7)
        A.loads(A.tile_loads(D1, 7, 67, 12288, R1) + A.tile_loads(D1, 27, 67, 12288, R2), None)
    A("s_barrier")
    A("s_waitcnt vmcnt(0)")
    c_silu(A)
    for q in range(4):
        A(f"v_mov_b32 v{12+q}, 0")
    A(f"v_lshrrev_b32 v4, 5, v{VL}")
    A(f"v_lshl_add_u32 v4, v4, 5, v26")
    A(f"v_add_u32 v4, {L_A + 7*SLAB}, v4")
    for t in range(0, 8, 2):
        A(f"ds_write_b128 v4, v[12:15] offset:{TS*t}")
    A.wait_cnt(E_X1, p.WDG)
    if not p.GBE:
        A.stamp(7)
        A.loads(A.tile_loads(D1, 7, 67, 12288, R1) + A.tile_loads(D1, 27, 67, 12288, R2), None)
    A.signal(C_MI2)
    m_pair(A, None, (9, 10))
    A("s_mov_b32 s68, 7")
    t128_prep(A, L_A, WS_YP, 68)
    A.tagm('y')
    A("s_branch L_WDf")


def m_pair(A, done_cnt, st=(2, 3)):
    perm_prog(A, R1, R0, after=8)
    A.mfma(R1, 28, R0, True)
    A.diag_add(R1)
    A.tagf(range(R1, R1 + 8))
    perm_prog(A, R2, R0)
    A.stamp(st[0])
    A.publ(R1, 24, 68)
    A.publ(R1 + 4, 25, 68)
    A.mfma(R2, 28, R0, True)
    A.diag_add(R2)
    A.tagf(range(R2, R2 + 8))
    A.publ(R2, 24, 69)
    A.publ(R2 + 4, 25, 69)
    A.fix(lambda: (A.pubg(R1, 24, 68), A.pubg(R1 + 4, 25, 68), A.pubg(R2, 24, 69), A.pubg(R2 + 4, 25, 69)))
    if done_cnt is not None:
        A.signal(done_cnt)
    A.stamp(st[1])


def x_rows(A):
    A.srd(D1, S_X, 16384)
    A(f"s_sub_u32 s{T0}, s{SW}, 8")
    A(f"s_lshl_b32 s{T1}, s{T0}, 12")
    A(f"v_lshlrev_b32 v4, 6, v{VL}")
    for k in range(4):
        A(f"buffer_load_dwordx4 v[{R0+4*k}:{R0+3+4*k}], v4, s[{D1}:{D1+3}], s{T1} offen offset:{16*k}")


def extra_h(A, lab):
    A(f"s_and_b32 s{T0}, s{SR}, 7")
    A(f"s_cmp_eq_u32 s{T0}, 3" if A.p.DUP else f"s_cmp_lg_u32 s{T0}, 2")
    A(f"s_cbranch_scc1 {lab}")
    A(f"s_xor_b32 s{SR32}, s{SR}, 1")
    A(f"s_lshl_b32 s{SR32}, s{SR32}, 1")
    A(f"s_add_u32 s{SR32}, s{SR32}, s{SW}")
    A(f"s_sub_u32 s{SR32}, s{SR32}, 12")
    A("s_branch L_HR")
    A.label(lab)


def role_FM(A):
    p = A.p
    A.label("L_FM")
    after_kernarg(A)
    if not p.HE:
        A(f"s_cmp_ge_u32 s{SW}, 12")
        A("s_cbranch_scc1 L_FW")
    if p.XP:
        A("s_branch L_fin")
    if not p.XE:
        x_rows(A)
    A(f"s_cmp_eq_u32 s{SW}, 11")
    A(f"s_cselect_b32 s{T0}, 14, 0")
    A(f"s_add_u32 s{SR}, s{SR}, s{T0}")
    A(f"s_and_b32 s{SR}, s{SR}, 15")
    if not p.HE:
        G2.c_load(A)
    A.srd(D1, S_WM, 12582912)
    A.stamp(6)
    A("s_waitcnt vmcnt(0)" if p.HE else "s_waitcnt vmcnt(1)")
    A.stamp(4)
    ln_stats(A, R0, 8)
    A.stamp(5)
    if p.HE:
        A("s_waitcnt lgkmcnt(0)")
        A(f"s_cmp_lg_u32 s{SW}, 8")
        A("s_cbranch_scc1 L_FMx")
        xcc_store(A)
        xcc_check(A)
        A.label("L_FMx")
        G2.c_load(A)
    A(f"s_sub_u32 s{T0}, s{SW}, 8")
    A(f"s_cmp_eq_u32 s{SW}, 9")
    A(f"s_cselect_b32 s{T3}, 1, 0")
    A(f"s_lshr_b32 s{T2}, s{T0}, 1")
    A(f"s_sub_u32 s{T2}, 2, s{T2}")
    A(f"s_lshl_b32 s{T1}, s{T0}, 2")
    A(f"s_lshr_b32 s{T1}, 0x2243, s{T1}")
    A(f"s_and_b32 s{T1}, s{T1}, 15")
    m_tile_off(A, T1, None)
    m_bases(A, T2, T3, None)
    A("s_add_u32 s69, s68, 0x10000")
    A(f"s_and_b32 s{SR}, s{SI}, 15")
    A.d64_voff(7, 12288, 5)
    A("v_add_u32 v27, 128, v7")
    A.tagm('n')
    m_vregs(A)
    A.init_sync()
    A("s_waitcnt vmcnt(0)")
    c_silu(A)
    A.get_mode()
    A(f"s_cmp_ge_u32 s{SW}, 10")
    A("s_cbranch_scc1 L_FMga")
    if p.SCG >= 2:
        A.wait_cnt(E_QP, p.SCN)
    elif p.SCG:
        A(f"s_and_b32 s{T0}, s{SR}, 7")
        A(f"s_cmp_eq_u32 s{T0}, 3")
        A(f"s_cselect_b32 s{T0}, {L_CNT+C_G}, {L_CNT+E_H}")
        A(f"s_cselect_b32 s{T1}, 8, 2")
        A.wait_var(T0, T1)
    else:
        A.wait_cnt(C_G, 8)
    A.stamp(1)
    A.loads(A.tile_loads(D1, 7, 67, 12288, R1) + A.tile_loads(D1, 27, 67, 12288, R2), None)
    if p.SCG == 3:
        A.signal(C_MI2)
    m_pair(A, E_M)
    A("s_branch L_F2")
    A.label("L_FMga")
    A(f"s_mov_b32 s{T0}, 0xc000")
    A(f"s_cmp_eq_u32 s{SW}, 10")
    A(f"s_cselect_b32 s{T0}, 0xcfff, s{T0}")
    A(f"s_bitcmp1_b32 s{T0}, s{SR}")
    A("s_cbranch_scc1 L_FMg2")
    A.signal(C_MI)
    A("s_branch L_F2")
    A.label("L_FMg2")
    if p.SCG == 3:
        A.wait_cnt(C_MI2, 2)
    elif p.GAQ:
        A.wait_cnt(E_QP, 8)
    else:
        A(f"s_cmp_ge_u32 s{SR}, 14")
        A(f"s_cselect_b32 s{T0}, {L_CNT+E_QP}, {L_CNT+E_M}")
        A(f"s_cselect_b32 s{T1}, 8, 2")
        A.wait_var(T0, T1)
    A.stamp(1)
    A.loads(A.tile_loads(D1, 7, 67, 12288, R1) + A.tile_loads(D1, 27, 67, 12288, R2), None)
    A.signal(C_MI)
    m_pair(A, E_GB)
    A("s_branch L_F2")
    A.label("L_FW")
    if p.HE:
        A.label("L_FW12b")
        A.label("L_FW13b")
        A.init_sync()
        A("s_waitcnt vmcnt(0)")
        A("s_branch L_F2")
        return
    A(f"s_cmp_eq_u32 s{SW}, 12")
    A("s_cbranch_scc1 L_FW12")
    A.init_sync()
    xcc_store(A)
    extra_h(A, "L_FW13b")
    xcc_check(A)
    A.stamp(1)
    A("s_branch L_F2")
    A.label("L_FW12")
    extra_h(A, "L_FW12b")
    A.init_sync()
    A("s_branch L_F2")


def hr_prep(A):
    mp_addr(A, 0, 29)
    A(f"s_lshl_b32 s68, s{SJ}, 17")
    A(f"s_lshl_b32 s{T1}, s{SR32}, 12")
    A(f"s_add_u32 s68, s68, s{T1}")
    A(f"s_and_b32 s{T1}, s{SR32}, 1")
    A(f"s_lshl_b32 s{T1}, s{T1}, 5")
    A(f"v_lshlrev_b32 v25, 3, v{VG}")
    A(f"v_add_u32 v25, s{T1}, v25")
    held = []

    def B(t):
        if t.startswith("buffer_load"):
            held.append(t)
        else:
            A(t)
    red_elem_prep(B, D1)
    A(f"s_add_u32 s{T2}, s{T4}, {WS_H}")
    A(f"s_add_u32 s{T4}, s{T4}, {WS_SB}")
    A("s_waitcnt lgkmcnt(0)")
    A.srd(D1, S_X, 16384)
    A(held[0])
    after_kernarg(A)


def head_HR(A):
    A.label("L_HH")
    A(f"s_lshr_b32 s{T0}, s{SW}, 1")
    A(f"s_and_b32 s{T0}, s{T0}, 1")
    A(f"s_xor_b32 s{T1}, s{T0}, 1")
    A(f"s_xor_b32 s{SR32}, s{SR}, s{T1}")
    A(f"s_lshl_b32 s{SR32}, s{SR32}, 1")
    A(f"s_and_b32 s{T1}, s{SW}, 1")
    A(f"s_add_u32 s{SR32}, s{SR32}, s{T1}")
    A(f"s_lshl_b32 s{T5}, s{T0}, 4")
    A(f"s_add_u32 s{T5}, s{T5}, s{SR}")
    hr_prep(A)
    A(f"s_load_dword s{SEP}, s[{S_WSP}:{S_WSP+1}], 0")
    A(f"s_bitcmp0_b32 0xf7f70404, s{T5}")
    A("s_cbranch_scc1 L_HH2")
    A.touch([(R0 + 4 * u, 29, 1024 * u, None) for u in range(4)], T3)
    A("s_barrier")
    A("s_branch L_HR1")
    A.label("L_HH2")
    A("s_barrier")
    A(f"s_cmp_ge_u32 s{SW}, 14")
    A("s_cbranch_scc1 L_FR")
    A("s_branch L_FW")


def role_FR(A):
    p = A.p
    A.label("L_FR")
    if not p.HE:
        after_kernarg(A)
        A(f"s_lshl_b32 s{SR32}, s{SR}, 1")
        A(f"s_add_u32 s{SR32}, s{SR32}, s{SW}")
        A(f"s_sub_u32 s{SR32}, s{SR32}, 14")
        A.label("L_HR")
        A.srd(D1, S_X, 16384)
        red_elem_prep(A, D1)
        mp_addr(A, 0, 29)
        A(f"s_add_u32 s{T2}, s{T4}, {WS_H}")
        A(f"s_add_u32 s{T4}, s{T4}, {WS_SB}")
        A(f"s_lshl_b32 s68, s{SJ}, 17")
        A(f"s_lshl_b32 s{T1}, s{SR32}, 12")
        A(f"s_add_u32 s68, s68, s{T1}")
        A(f"s_and_b32 s{T1}, s{SR32}, 1")
        A(f"s_lshl_b32 s{T1}, s{T1}, 5")
        A(f"v_lshlrev_b32 v25, 3, v{VG}")
        A(f"v_add_u32 v25, s{T1}, v25")
        A(f"s_and_b32 s{T0}, s{SR}, 7")
        A(f"s_cmp_lg_u32 s{T0}, 3")
        A("s_cbranch_scc1 L_HR1")
    A.init_sync()
    A("s_waitcnt vmcnt(0)")
    A("v_lshlrev_b32 v23, 16, v23")
    A("s_branch L_HR2")
    A.label("L_HR1")
    if p.HE:
        nt = 4
    else:
        nt = A.touch([(R0 + 4 * u, 29, 1024 * u, None) for u in range(4)], T3)
    A.stamp(2)
    A.init_sync()
    A.stamp(1)
    A.wait_cnt(C_ST, 4)
    A.stamp(3)
    A(f"ds_read_b64 v[30:31], v25 offset:{L_STAT}")
    A(f"s_waitcnt vmcnt({nt}) lgkmcnt(0)")
    A("v_lshlrev_b32 v23, 16, v23")
    A("v_sub_f32 v24, v23, v30")
    A.rnd(24)
    A("v_mul_f32 v24, v24, v31")
    A.rnd(24)
    A.stamp(4)
    A.poll([(R0 + 4 * u, 29, 1024 * u, None) for u in range(4)], T3, 'm')
    A.stamp(5)
    for q in range(4):
        A(f"v_add_f32 v{R0+q}, v{R0+q}, v{R0+4+q}")
        A(f"v_add_f32 v{R0+8+q}, v{R0+8+q}, v{R0+12+q}")
    A.packed_red2(R0, R0 + 8)
    A.rnd2(R0, R0 + 2, 4)
    A(f"v_add_f32 v{R0+2}, 1.0, v{R0+2}")
    A.rnd(R0 + 2)
    A(f"v_mul_f32 v24, v24, v{R0+2}")
    A.rnd(24)
    A(f"v_add_f32 v24, v24, v{R0}")
    A.rnd_tag(24)
    A.quad_gather(24, 8)
    set_exec64(A, EX_V)
    A.pubg(8, 26, T2)
    A("s_mov_b64 exec, -1")
    A.stamp(6)
    if p.PW:
        A.signal(E_H)
        A.srd(D2, S_WO, 8388608)
        A(f"s_lshr_b32 s{T0}, s{SR32}, 2")
        A(f"s_lshl_b32 s{T0}, s{T0}, 9")
        A(f"s_and_b32 s{T1}, s{SR32}, 2")
        A(f"s_lshl_b32 s{T1}, s{T1}, 5")
        A(f"s_add_u32 s{T0}, s{T0}, s{T1}")
        A(f"s_and_b32 s{T1}, s{SR32}, 1")
        A(f"s_lshl_b32 s{T1}, s{T1}, 8")
        A(f"s_add_u32 s{T0}, s{T0}, s{T1}")
        A(f"s_lshl_b32 s{T0}, s{T0}, 11")
        A(f"s_lshl_b32 s{T1}, s{SJ}, 8")
        A(f"s_add_u32 s{T0}, s{T0}, s{T1}")
        A(f"v_lshrrev_b32 v6, 1, v{VL}")
        A("v_lshlrev_b32 v6, 11, v6")
        A(f"v_and_b32 v7, 1, v{VL}")
        A("v_lshl_add_u32 v6, v7, 7, v6")
        if p.PW & 4:
            A.wait_cnt(E_H, 2)
        for k in range(2 * (p.PW & 3)):
            A(f"s_add_u32 s{T1}, s{T0}, {(k & 1) * 262144 + (k >> 1) * 65536}")
            A(f"buffer_load_dword v{R0+16+k}, v6, s[{D2}:{D2+3}], s{T1} offen")
        A("s_branch L_HR3")
    A.label("L_HR2")
    A.signal(E_H)
    A.label("L_HR3")
    A(f"s_cmp_eq_u32 s{SW}, 12")
    A("s_cbranch_scc1 L_FW12b")
    A(f"s_cmp_eq_u32 s{SW}, 13")
    A("s_cbranch_scc1 L_FW13b")
    if p.TOUCH:
        A.wait_cnt(E_QP, 8)
        mp_addr(A, 2)
        A.touch([(R0 + 4 * u, 6, 1024 * u, None) for u in range(4)], T3)
        if p.TXF:
            A(f"s_sub_u32 s{T3}, s{T3}, {1 << 20}")
            A.touch([(R0 + 16 + 4 * u, 6, 1024 * u, None) for u in range(2)], T3)
            if p.TXF == 1:
                A.wait_cnt(E_M, 2)
            A.touch([(R0 + 4 * u, 6, 1024 * u, None) for u in (2, 3)], T3)
            for n, reg in enumerate((WS_XP, WS_YP)):
                A(f"s_add_u32 s{T0}, s{T3}, {reg - WS_MP - (1 << 20)}")
                A.touch([(R0 + 16 + 8 * n + 4 * k, 6, 1024 * k, None) for k in range(2)], T0)
    A("s_branch L_F2")


def red2x2(A, z):
    for u in (0, 16):
        for h in (0, 8):
            for q in (0, 2):
                A(f"v_pk_add_f32 v[{z+u+h+q}:{z+u+h+q+1}], v[{z+u+h+q}:{z+u+h+q+1}], v[{z+u+h+4+q}:{z+u+h+5+q}]")
    for h in (0, 8):
        for q in range(4):
            A(f"v_add_f32_dpp v{z+h+q}, v{z+h+q}, v{z+h+q} row_ror:8 row_mask:0xf bank_mask:0x3")
    for h in (0, 8):
        for q in range(4):
            A(f"v_add_f32_dpp v{z+h+q}, v{z+16+h+q}, v{z+16+h+q} row_ror:8 row_mask:0xf bank_mask:0xc")
    B = z + 8
    for q in range(4):
        A(f"v_permlane32_swap_b32 v{z+q}, v{B+q}")
    for q in (0, 2):
        A(f"v_pk_add_f32 v[{z+q}:{z+q+1}], v[{z+q}:{z+q+1}], v[{B+q}:{B+q+1}]")
    A(f"v_permlane16_swap_b32 v{z}, v{z+1}")
    A(f"v_permlane16_swap_b32 v{z+2}, v{z+3}")
    A(f"v_add_f32 v{z}, v{z}, v{z+1}")
    A(f"v_add_f32 v{z+2}, v{z+2}, v{z+3}")
    A(f"v_permlane32_swap_b32 v{z}, v{z+2}")


def o_combine(A):
    p = A.p
    oc_addr(A)
    M0_, L0_, M1_, L1_, D0_, D1_, D2_, D3_ = 8, 12, 16, 20, R2, R2 + 4, R2 + 8, R2 + 12
    A.wait_cnt(p.OCW, 8)
    sl = [(M0_, 7, 0, None), (M1_, 7, 64, None), (L0_, 7, 16, None), (L1_, 7, 80, None)]
    dl = [(D0_ + 4 * k, 6, 1024 * k, None) for k in range(4)]
    if p.OC1:
        A.poll(sl + dl, T3, 'bboooooo')
    else:
        A.poll(sl, T3, 'bboo')
    X = R2 + 16

    def factors():
        for q in range(4):
            A(f"v_max_f32 v{X+q}, v{M0_+q}, v{M1_+q}")
        for q in range(4):
            A.bfly(X + q, X + 4 + q, "v_max_f32", bits=(5,))
        for m in (M0_, M1_):
            for q in range(4):
                A(f"v_sub_f32 v{m+q}, v{m+q}, v{X+q}")
                A(f"v_mul_f32 v{m+q}, {LOG2E:#x}, v{m+q}")
                A(f"v_exp_f32 v{m+q}, v{m+q}")
        for q in range(4):
            A(f"v_mul_f32 v{L0_+q}, v{L0_+q}, v{M0_+q}")
        for q in range(4):
            A(f"v_fmac_f32 v{L0_+q}, v{L1_+q}, v{M1_+q}")
        for q in range(4):
            A.bfly(L0_ + q, X + q, "v_add_f32", bits=(5,))
        for q in range(4):
            A(f"v_rcp_f32 v{L0_+q}, v{L0_+q}")
    A.stamp(1)
    if p.OC1:
        factors()
    else:
        A.poll(dl, T3, 'o', hook=factors)
    for z in (D0_, D2_):
        for q in (0, 2):
            A(f"v_pk_mul_f32 v[{z+q}:{z+q+1}], v[{z+q}:{z+q+1}], v[{M0_+q}:{M0_+q+1}]")
    for z in (D0_, D2_):
        for q in (0, 2):
            A(f"v_pk_fma_f32 v[{z+q}:{z+q+1}], v[{z+4+q}:{z+5+q}], v[{M1_+q}:{M1_+q+1}], v[{z+q}:{z+q+1}]")
    for q in range(4):
        A(f"v_permlane32_swap_b32 v{D0_+q}, v{D2_+q}")
    for q in (0, 2):
        A(f"v_pk_add_f32 v[{D0_+q}:{D0_+q+1}], v[{D0_+q}:{D0_+q+1}], v[{D2_+q}:{D2_+q+1}]")
    for q in (0, 2):
        A(f"v_pk_mul_f32 v[{D0_+q}:{D0_+q+1}], v[{D0_+q}:{D0_+q+1}], v[{L0_+q}:{L0_+q+1}]")
    for q in (0, 2):
        A(f"v_cvt_pk_bf16_f32 v{D2_+q}, v{D0_+q}, v{D0_+q+1}")
    for q in (0, 2):
        A(f"v_lshl_or_b32 v{D0_+q}, v{D2_+q}, 16, v{VTAG}")
        A(f"v_and_or_b32 v{D0_+q+1}, v{D2_+q}, s{SHM}, v{VTAG}")
    A.pubg(D0_, 6, T4)
    A.signal(E_OC)
    A.stamp(2)


def role_LR(A):
    p = A.p
    A.label("L_LR")
    A(f"s_cmp_ge_u32 s{SW}, 8")
    A("s_cbranch_scc1 L_fin")
    A(f"s_lshl_b32 s{SR32}, s{SR}, 3")
    A(f"s_add_u32 s{SR32}, s{SR32}, s{SW}")
    A(f"s_lshl_b32 s{SR32}, s{SR32}, 1")
    A(f"s_sub_u32 s{SR32}, s{SR32}, 224")
    mp_addr(A, 2)
    A(f"v_bfe_u32 v4, v{VL}, 2, 2")
    A("v_lshlrev_b32 v26, 6, v4")
    A(f"v_lshl_add_u32 v26, v{VG}, 4, v26")
    A(f"s_lshl_b32 s{T4}, s{SJ}, 5")
    A(f"s_add_u32 s{T4}, s{T4}, s{SR32}")
    A(f"s_lshl_b32 s{T4}, s{T4}, 7")
    A(f"s_add_u32 s{T4}, s{T4}, {WS_SB}")
    A(f"s_add_u32 s{T2}, s{T4}, {WS_CB - WS_SB}")
    A.wait_cnt(E_M, 2)
    Z = R1
    A.poll([(Z + 4 * k, 6, 1024 * (k & 3), 4096 if k >= 4 else None) for k in range(8)], T3, 'n')
    A.stamp(7)
    red2x2(A, Z)
    A.rnd(Z + 2)
    A(f"v_add_f32 v{Z+2}, 1.0, v{Z+2}")
    A.rnd_tag(Z)
    A.rnd_tag(Z + 2)
    A.quad_gather(Z, 8)
    A.quad_gather(Z + 2, 12)
    A("s_mov_b32 exec_lo, 0x11111111")
    A("s_mov_b32 exec_hi, 0x11111111")
    A.pubg(8, 26, T4)
    A.pubg(12, 26, T2)
    A("s_mov_b64 exec, -1")
    A.signal(E_OC)
    A.stamp(8)
    if not p.PF:
        A("s_branch L_fin")
    A(f"s_sub_u32 s{SR}, s{SR}, 2")
    A("s_branch L_F2b")
    A.label("L_PF")
    A(f"s_add_u32 s{T3}, s{T3}, {8*64*7168}")
    A.wait_cnt(E_GB, 2)
    A.wait_cnt(E_OC, 8)
    A.loads(A.tile_loads(D1, 7, T3, 8 * 7168, R1, flags=p.PFF), None)
    A("s_waitcnt vmcnt(0)")
    A.stamp(9)
    A("s_branch L_fin")


def build(p):
    A = Gen3(p)
    A.inE = False
    A.raw(f"; @launch grid=(256,1,1) block=(1024,1,1) lds={LDS7}")
    A.raw('.amdgcn_target "amdgcn-amd-amdhsa--gfx950"')
    kernel_begin(A, KN)
    A.raw("L_start:")
    A.stamp(0)
    A("s_load_dwordx16 s[4:19], s[0:1], 0")
    A("s_load_dwordx8 s[20:27], s[0:1], 64")
    A("s_load_dwordx4 s[28:31], s[0:1], 96")
    if p.TOPF:
        A("s_getpc_b64 s[44:45]")
        A.raw("L_pct:")
        A(f"s_lshr_b32 s{SI}, s2, 3")
        if p.TOPF == 1:
            A("v_lshrrev_b32 v4, 6, v0")
            A(f"s_lshl_b32 s{T0}, s{SI}, 11")
            A(f"s_and_b32 s{T0}, s{T0}, 0x7fff")
            A(f"v_lshl_add_u32 v5, v4, 7, s{T0}")
        else:
            A(f"s_cmp_lt_u32 s{SI}, {p.NSEL}")
            A(f"s_cselect_b32 s{T0}, 128, 0")
            A("v_xor_b32 v5, 0x300, v0")
            A(f"v_mul_u32_u24 v5, s{T0}, v5")
        A("v_min_u32 v5, L_end-L_pct, v5")
        A("global_load_dword v127, v5, s[44:45]")
    if p.CPF:
        A("s_getpc_b64 s[44:45]")
        for k in range(p.CPF):
            A(f"s_load_dword s46, s[44:45], {128*(k+1)}")
    A("s_cmp_ge_u32 s2, 256")
    A("s_cbranch_scc1 L_end")
    A("v_lshrrev_b32 v4, 6, v0")
    A("v_and_b32 v0, 63, v0")
    A(f"v_readfirstlane_b32 s{SW}, v4")
    A(f"v_and_b32 v{VC}, 15, v0")
    A(f"v_lshrrev_b32 v{VG}, 4, v0")
    A(f"s_and_b32 s{SJ}, s2, 7")
    A(f"s_lshr_b32 s{SI}, s2, 3")
    A(f"s_and_b32 s{SR}, s{SI}, 15")
    A(f"s_mov_b32 s{SLO}, 0x05040100")
    A(f"s_mov_b32 s{SHI}, 0x07060302")
    A(f"s_mov_b32 s{SHM}, 0xffff0000")
    A.stamps_init()
    zero_cnt(A)
    A(f"s_cmp_ge_u32 s{SW}, 8")
    A("s_cbranch_scc1 L_gen")
    A(f"s_cmp_ge_u32 s{SI}, 16")
    A("s_cbranch_scc1 L_FQ")
    A(f"s_cmp_ge_u32 s{SW}, 4")
    A("s_cbranch_scc1 L_ES")
    A.inE = True
    head_EM(A)
    A.inE = False
    A.label("L_gen")
    if p.SPF:
        A(f"s_cmp_lt_u32 s{SI}, 16")
        A("s_cbranch_scc1 L_gen2")
        A(f"s_cmp_ge_u32 s{SW}, 12")
        A("s_cbranch_scc1 L_HH" if p.HE else "s_cbranch_scc1 L_gen2")
        A("s_waitcnt lgkmcnt(0)")
        x_rows(A)
        A.label("L_gen2")
    elif p.prefetch:
        A(f"s_cmp_lt_u32 s{SI}, 16")
        A("s_cbranch_scc1 L_gen2")
        A("s_getpc_b64 s[44:45]")
        A.raw("L_pc0:")
        A("s_sub_u32 s44, s44, L_pc0-L_start")
        A("s_subb_u32 s45, s45, 0")
        A("s_mov_b32 s46, L_end-L_start")
        A("s_mov_b32 s47, 0x20000")
        A(f"v_lshlrev_b32 v6, 4, v{VL}")
        A(f"s_and_b32 s{T0}, s{SI}, 1")
        A(f"s_lshl_b32 s{T0}, s{T0}, 4")
        A(f"s_add_u32 s{T0}, s{T0}, s{SW}")
        A(f"s_lshl_b32 s{T0}, s{T0}, 10")
        A(f"s_sub_u32 s{T1}, s{T0}, 8192")
        A(f"buffer_load_dwordx4 v[{R2}:{R2+3}], v6, s[44:47], s{T1} offen")
        A(f"buffer_load_dwordx4 v[{R2+4}:{R2+7}], v6, s[44:47], s{T0} offen")
        if p.XE:
            A(f"s_cmp_ge_u32 s{SW}, 12")
            A("s_cbranch_scc1 L_gen2")
            A("s_waitcnt lgkmcnt(0)")
            x_rows(A)
        A.label("L_gen2")
    A("s_waitcnt lgkmcnt(0)")
    A(f"s_load_dword s{SEP}, s[{S_WSP}:{S_WSP+1}], 0")
    A("s_barrier")
    A(f"s_cmp_lt_u32 s{SI}, 16")
    A("s_cbranch_scc1 L_EA")
    if not p.HE:
        A(f"s_cmp_ge_u32 s{SW}, 14")
        A("s_cbranch_scc1 L_FR")
    A("s_branch L_FM")
    if p.HE:
        head_HR(A)
    head_ES(A)
    head_FQ(A)
    A.inE = True
    role_EM(A)
    role_ES(A)
    A.inE = False
    role_FQ(A)
    role_FM(A)
    role_FR(A)
    A.inE = True
    role_EA(A)
    A.late = True
    role_WD(A)
    role_WO(A)
    A.inE = False
    role_LR(A)
    role_E2(A)
    A.label("L_fin")
    A.stamps_out()
    A.label("L_end")
    A("s_endpgm")
    kernel_desc(A, KN, 128, 102)
    return A.text()


def variant(name, **kw):
    p = P()
    for k, v in kw.items():
        assert hasattr(p, k), k
        setattr(p, k, v)
    open(name + ".s", "w").write(build(p))
    p.diag = True
    open(name + "_d.s", "w").write(build(p))


if __name__ == "__main__":
    b = dict(WQM='s', WQ0=0, MG=1, NTK='m', SBS=1, X1S=1)
    def v(n, **kw):
        d = dict(b); d.update(kw); variant(n, **d)
    b.update(TXW=4, TXF=0, GAQ=0, KV0=4)
    e = dict(OCF=1, WOM=0xf0, WOV=0x0f)
    g = dict(OCF=1, WOM=0xfc, WOV=0x03)
    b.update(SBS=2, GAQ=1)
    b.update(X1S=3)
    h = dict(OCF=1, WOM=0xf0, WOV=0x03)
    v("z7", ATT=0, FQA=0, **e)
    v("za", FQA=0, **e)
    v("zb", ATT=2, FQA=0, **e)
    v("zc", **e)
    k = dict(OT=2, X1W=0, TOPF=1, OCF=1)
    v("zl", WOM=0xf0, WOV=0x0f, **k)
    k.update(WOM=0xf0, WOV=0x0f)
    v("zn", PK=7, **k)
    v("zo", PK=15, **k)
    k.update(PK=15)
    v("zp", **dict(k, WOM=0x70))
    k.update(WOM=0x70)
    v("zq", ATT=3, **k)
    v("zr", ATT=3, LQ='m', **k)
    v("zs", ATT=3, FS=1, **k)
```
